```python
import torch

def _softmax(x, axis=-1):
    return torch.softmax(x, dim=axis)
def _gelu(x):
    return torch.nn.functional.gelu(x, approximate="tanh")
def _silu(x):
    return torch.nn.functional.silu(x)
def _sigmoid(x):
    return torch.sigmoid(x)
def _layernorm(x, axis=-1, eps=1e-5):
    m = x.mean(dim=axis, keepdim=True)
    v = x.var(dim=axis, keepdim=True, unbiased=False)
    return (x - m) / torch.sqrt(v + eps)
def _scatter_add(tgt, idx, src, axis=0):
    return tgt.clone().index_add_(axis, idx, src)
def _segment_sum(src, seg, n):
    out = torch.zeros((n,) + src.shape[1:], dtype=src.dtype)
    return out.index_add_(0, seg, src)
def _pad(x, pw):
    flat = tuple(v for pair in reversed(pw) for v in pair)
    return torch.nn.functional.pad(x, flat)

kernel_name = 'sequential_preLN__spectral_gfnet__geglu_ffn__prompt'

def setup_inputs():

    _w = (lambda a: (lambda t: t.to(torch.bfloat16) if t.is_floating_point() else t)(torch.as_tensor(a)))
    def _A_setup():
        B, S, D = 1, 2048, 640
        Df = D // 2 + 1
        return {
            "x": _w((lambda *s: torch.randn(*s, dtype=torch.bfloat16) * 0.05)(B, S, D)),
            "w_r": _w((lambda *s: torch.randn(*s, dtype=torch.bfloat16) * 0.4)(S, Df) * 0.02),
            "w_i": _w((lambda *s: torch.randn(*s, dtype=torch.bfloat16) * 0.4)(S, Df) * 0.02),
        }
    _A_in = _A_setup()

    def _B_setup():
        B, S, D, F = 1, 2048, 640, 1536
        return {
            "x": _w((lambda *s: torch.randn(*s, dtype=torch.bfloat16) * 0.05)(B, S, D)),
            "w_gate": _w((lambda *s: torch.randn(*s, dtype=torch.bfloat16) * 0.05)(D, F)),
            "w_up": _w((lambda *s: torch.randn(*s, dtype=torch.bfloat16) * 0.05)(D, F)),
            "w_down": _w((lambda *s: torch.randn(*s, dtype=torch.bfloat16) * 0.05)(F, D)),
        }
    _B_in = _B_setup()

    return {
        "A_x": _A_in["x"],
        "A_w_r": _A_in["w_r"],
        "A_w_i": _A_in["w_i"],
        "B_x": _B_in["x"],
        "B_w_gate": _B_in["w_gate"],
        "B_w_up": _B_in["w_up"],
        "B_w_down": _B_in["w_down"],
    }

def reference(A_x, A_w_r, A_w_i, B_x, B_w_gate, B_w_up, B_w_down):
    def _A_ref(x, w_r, w_i):
        B, S, D = x.shape
        X = (lambda x, axes=(-2,-1): torch.fft.rfft2(x.float(), dim=axes))(x, axes=(-2, -1))
        W = w_r + 1j * w_i
        X = X * W
        y = (lambda x, s, axes=(-2,-1): torch.fft.irfft2(x, s=s, dim=axes).to(torch.bfloat16))(X, (S, D), axes=(-2, -1))
        return y

    def _B_ref(x, w_gate, w_up, w_down):
        return (_gelu(x @ w_gate) * (x @ w_up)) @ w_down

    x = A_x
    h = x + _A_ref(_layernorm(x, axis=-1), A_w_r, A_w_i)
    h2 = h + _B_ref(_layernorm(h, axis=-1), B_w_gate, B_w_up, B_w_down)
    return h2
```

```python
import math
import struct


def f32hex(x):
    return "0x%08x" % struct.unpack("<I", struct.pack("<f", x))[0]


class Asm:
    def __init__(self):
        self.lines = []
        self.lab = 0

    def __call__(self, s):
        self.lines.append("    " + s)

    def raw(self, s):
        self.lines.append(s)

    def label(self, name):
        self.lines.append(name + ":")

    def newlabel(self, base):
        self.lab += 1
        return "L_%s_%d" % (base, self.lab)

    def comment(self, s):
        self.lines.append("    ; " + s)

    def text(self):
        return "\n".join(self.lines) + "\n"

    @staticmethod
    def P(n):
        return "v[%d:%d]" % (n, n + 1)

    def cadd(self, d, a, b):
        self("v_pk_add_f32 %s, %s, %s" % (self.P(d), self.P(a), self.P(b)))

    def csub(self, d, a, b):
        self("v_pk_add_f32 %s, %s, %s neg_lo:[0,1] neg_hi:[0,1]" % (self.P(d), self.P(a), self.P(b)))

    def caddi(self, d, a, b):
        self("v_pk_add_f32 %s, %s, %s op_sel:[0,1] op_sel_hi:[1,0] neg_lo:[0,1]" % (self.P(d), self.P(a), self.P(b)))

    def csubi(self, d, a, b):
        self("v_pk_add_f32 %s, %s, %s op_sel:[0,1] op_sel_hi:[1,0] neg_hi:[0,1]" % (self.P(d), self.P(a), self.P(b)))

    def caddrot(self, d, a, b, sign):
        if sign > 0:
            self.caddi(d, a, b)
        else:
            self.csubi(d, a, b)

    def cmul(self, d, a, w, t, conj=False):
        self("v_pk_mul_f32 %s, %s, %s op_sel:[0,0] op_sel_hi:[1,0]" % (self.P(t), self.P(a), self.P(w)))
        if not conj:
            self("v_pk_fma_f32 %s, %s, %s, %s op_sel:[1,1,0] op_sel_hi:[0,1,1] neg_lo:[0,1,0]"
                 % (self.P(d), self.P(a), self.P(w), self.P(t)))
        else:
            self("v_pk_fma_f32 %s, %s, %s, %s op_sel:[1,1,0] op_sel_hi:[0,1,1] neg_hi:[0,1,0]"
                 % (self.P(d), self.P(a), self.P(w), self.P(t)))

    def cmul_acc(self, d, a, w, c, t):
        self("v_pk_fma_f32 %s, %s, %s, %s op_sel:[0,0,0] op_sel_hi:[1,0,1]" % (self.P(t), self.P(a), self.P(w), self.P(c)))
        self("v_pk_fma_f32 %s, %s, %s, %s op_sel:[1,1,0] op_sel_hi:[0,1,1] neg_lo:[0,1,0]"
             % (self.P(d), self.P(a), self.P(w), self.P(t)))

    def cfma_real(self, d, b, sr, c, neg=False):
        n = " neg_lo:[1,0,0] neg_hi:[1,0,0]" if neg else ""
        self("v_pk_fma_f32 %s, %s, s[%d:%d], %s op_sel_hi:[1,0,1]%s" % (self.P(d), self.P(b), sr, sr + 1, self.P(c), n))

    def cmul_real(self, d, b, sr):
        self("v_pk_mul_f32 %s, %s, s[%d:%d] op_sel_hi:[1,0]" % (self.P(d), self.P(b), sr, sr + 1))

    def cfma_rot(self, d, b, sr, c, sign):
        if sign < 0:
            self("v_pk_fma_f32 %s, %s, s[%d:%d], %s op_sel:[1,0,0] op_sel_hi:[0,0,1] neg_hi:[1,0,0]"
                 % (self.P(d), self.P(b), sr, sr + 1, self.P(c)))
        else:
            self("v_pk_fma_f32 %s, %s, s[%d:%d], %s op_sel:[1,0,0] op_sel_hi:[0,0,1] neg_lo:[1,0,0]"
                 % (self.P(d), self.P(b), sr, sr + 1, self.P(c)))

    def bfly(self, a, b, pool):
        t = pool.pop()
        self.csub(t, a, b)
        self.cadd(a, a, b)
        pool.append(b)
        return a, t

    def radix4(self, x, pool, sign):
        b0, b2 = self.bfly(x[0], x[2], pool)
        b1, b3 = self.bfly(x[1], x[3], pool)
        y0, y2 = self.bfly(b0, b1, pool)
        t = pool.pop()
        self.caddrot(t, b2, b3, -sign)
        self.caddrot(b2, b2, b3, sign)
        pool.append(b3)
        return [y0, b2, y2, t]

    def radix8(self, x, pool, sign, s_rsqrt2):
        a0, a4 = self.bfly(x[0], x[4], pool)
        a1, a5 = self.bfly(x[1], x[5], pool)
        a2, a6 = self.bfly(x[2], x[6], pool)
        a3, a7 = self.bfly(x[3], x[7], pool)
        ev = self.radix4([a0, a1, a2, a3], pool, sign)
        self.caddrot(a5, a5, a5, sign)
        self.caddrot(a7, a7, a7, -sign)
        c2 = pool.pop()
        self.caddrot(c2, a4, a6, -sign)
        self.caddrot(a4, a4, a6, sign)
        pool.append(a6)
        c0 = a4
        c3u, c1u = self.bfly(a5, a7, pool)
        x5 = pool.pop()
        self.cfma_real(x5, c1u, s_rsqrt2, c0, neg=True)
        self.cfma_real(c0, c1u, s_rsqrt2, c0)
        pool.append(c1u)
        x1 = c0
        x7 = pool.pop()
        self.cfma_rot(x7, c3u, s_rsqrt2, c2, -sign)
        self.cfma_rot(c2, c3u, s_rsqrt2, c2, sign)
        pool.append(c3u)
        x3 = c2
        return [ev[0], x1, ev[1], x3, ev[2], x5, ev[3], x7]

    def radix5(self, x, pool, sign, sc1, sc2, ss1, ss2):
        t1, t3 = self.bfly(x[1], x[4], pool)
        t2, t4 = self.bfly(x[2], x[3], pool)
        m1 = pool.pop()
        m2 = pool.pop()
        self.cfma_real(m1, t1, sc1, x[0])
        self.cfma_real(m2, t1, sc2, x[0])
        self.cfma_real(m1, t2, sc2, m1)
        self.cfma_real(m2, t2, sc1, m2)
        self.cadd(x[0], x[0], t1)
        self.cadd(x[0], x[0], t2)
        n1, n2 = t1, t2
        self.cmul_real(n1, t3, ss1)
        self.cmul_real(n2, t3, ss2)
        self.cfma_real(n1, t4, ss2, n1)
        self.cfma_real(n2, t4, ss1, n2, neg=True)
        self.caddrot(t3, m1, n1, -sign)
        self.caddrot(m1, m1, n1, sign)
        self.caddrot(t4, m2, n2, -sign)
        self.caddrot(m2, m2, n2, sign)
        pool.append(n1)
        pool.append(n2)
        return [x[0], m1, m2, t4, t3]

    def twiddle_powers(self, w, n, t):
        for k in range(2, n + 1):
            a = k // 2
            b = k - a
            self.cmul(w[k], w[a], w[b], t)

    def sincos_pair(self, d, vang):
        self("v_cos_f32 v%d, v%d" % (d, vang))
        self("v_sin_f32 v%d, v%d" % (d + 1, vang))

    def wave_sum(self, v, sdst):
        m = " row_mask:0xf bank_mask:0xf"
        self("s_nop 1")
        self("v_add_f32_dpp v%d, v%d, v%d quad_perm:[1,0,3,2]%s" % (v, v, v, m))
        self("s_nop 1")
        self("v_add_f32_dpp v%d, v%d, v%d quad_perm:[2,3,0,1]%s" % (v, v, v, m))
        self("s_nop 1")
        self("v_add_f32_dpp v%d, v%d, v%d row_half_mirror%s" % (v, v, v, m))
        self("s_nop 1")
        self("v_add_f32_dpp v%d, v%d, v%d row_mirror%s" % (v, v, v, m))
        self("s_nop 1")
        self("v_add_f32_dpp v%d, v%d, v%d row_bcast:15 row_mask:0xa bank_mask:0xf" % (v, v, v))
        self("s_nop 1")
        self("v_add_f32_dpp v%d, v%d, v%d row_bcast:31 row_mask:0xc bank_mask:0xf" % (v, v, v))
        self("s_nop 1")
        self("v_readlane_b32 s%d, v%d, 63" % (sdst, v))
        self("s_nop 1")

    def srd(self, sd, sbase, nbytes):
        self("s_mov_b32 s%d, s%d" % (sd, sbase))
        self("s_and_b32 s%d, s%d, 0xffff" % (sd + 1, sbase + 1))
        self("s_mov_b32 s%d, 0x%x" % (sd + 2, nbytes))
        self("s_mov_b32 s%d, 0x00020000" % (sd + 3))

    def srd_off(self, sd, sbase, off, nbytes):
        self("s_add_u32 s%d, s%d, 0x%x" % (sd, sbase, off))
        self("s_addc_u32 s%d, s%d, 0" % (sd + 1, sbase + 1))
        self("s_and_b32 s%d, s%d, 0xffff" % (sd + 1, sd + 1))
        self("s_mov_b32 s%d, 0x%x" % (sd + 2, nbytes))
        self("s_mov_b32 s%d, 0x00020000" % (sd + 3))

    def sconst_pair(self, s, val):
        self("s_mov_b32 s%d, %s" % (s, f32hex(val)))
        self("s_mov_b32 s%d, %s" % (s + 1, f32hex(val)))


def kernel_header(a, name):
    a.raw(".globl %s" % name)
    a.raw(".p2align 8")
    a.raw(".type %s,@function" % name)
    a.raw("%s:" % name)


def kernel_desc(a, name, vgpr, sgpr, accum=None, agpr=0):
    if accum is None:
        accum = (vgpr + 3) // 4 * 4
    nfv = max(vgpr, accum + agpr) if agpr else vgpr
    a.raw(".p2align 6")
    a.raw(".amdhsa_kernel %s" % name)
    a.raw("  .amdhsa_next_free_vgpr %d" % nfv)
    a.raw("  .amdhsa_next_free_sgpr %d" % sgpr)
    a.raw("  .amdhsa_accum_offset %d" % accum)
    a.raw("  .amdhsa_group_segment_fixed_size 0")
    a.raw("  .amdhsa_kernarg_size 80")
    a.raw("  .amdhsa_user_sgpr_count 2")
    a.raw("  .amdhsa_user_sgpr_kernarg_segment_ptr 1")
    a.raw("  .amdhsa_system_sgpr_workgroup_id_x 1")
    a.raw(".end_amdhsa_kernel")
```

```python
import math
from asmlib import *

WS_ZT = 0x0000000
WS_YT = 0x0600000
WS_WT = 0x0C00000
WS_H = 0x1000000
WS_LN2F = 0x1400000
WS_WGU = 0x1800000
WS_WDF = 0x1C00000
WS_ACTF = 0x2000000
ZT_BYTES = 321 * 2048 * 8
WT_BYTES = 321 * 2048 * 4
X_BYTES = 2048 * 640 * 2
WF_BYTES = 2048 * 321 * 2

WSCR = 2880
TBASE = 8 * WSCR
K13_LDS = TBASE + 384 * 80

K1_NWT = 96


def emit_layernorm(a, X, vt, s_tmp, s_inv640):
    t0 = vt
    a.cadd(t0, X[0], X[1])
    a.cadd(t0 + 2, X[2], X[3])
    a.cadd(t0, t0, X[4])
    a.cadd(t0, t0, t0 + 2)
    a("v_add_f32 v%d, v%d, v%d" % (t0, t0, t0 + 1))
    a.wave_sum(t0, s_tmp)
    a("v_mov_b32 v%d, s%d" % (t0 + 6, s_inv640))
    a("v_mul_f32 v%d, s%d, v%d" % (t0 + 6, s_tmp, t0 + 6))
    a("v_mov_b32 v%d, v%d" % (t0 + 7, t0 + 6))
    for j in range(5):
        a.csub(t0 + 2, X[j], t0 + 6)
        if j == 0:
            a("v_pk_mul_f32 %s, %s, %s" % (a.P(t0), a.P(t0 + 2), a.P(t0 + 2)))
        else:
            a("v_pk_fma_f32 %s, %s, %s, %s" % (a.P(t0), a.P(t0 + 2), a.P(t0 + 2), a.P(t0)))
    a("v_add_f32 v%d, v%d, v%d" % (t0, t0, t0 + 1))
    a.wave_sum(t0, s_tmp)
    a("v_mov_b32 v%d, s%d" % (t0 + 4, s_inv640))
    a("v_mul_f32 v%d, s%d, v%d" % (t0 + 4, s_tmp, t0 + 4))
    a("v_cvt_pk_bf16_f32 v%d, v%d, v%d" % (t0 + 4, t0 + 4, t0 + 6))
    a("v_and_b32 v%d, 0xffff0000, v%d" % (t0 + 6, t0 + 4))
    a("v_mov_b32 v%d, v%d" % (t0 + 7, t0 + 6))
    a("v_lshlrev_b32 v%d, 16, v%d" % (t0 + 4, t0 + 4))
    a("v_add_f32 v%d, %s, v%d" % (t0 + 4, f32hex(1e-5), t0 + 4))
    a("v_cvt_pk_bf16_f32 v%d, v%d, v%d" % (t0 + 4, t0 + 4, t0 + 4))
    a("v_lshlrev_b32 v%d, 16, v%d" % (t0 + 4, t0 + 4))
    a("v_sqrt_f32 v%d, v%d" % (t0 + 4, t0 + 4))
    a("s_nop 0")
    a("v_cvt_pk_bf16_f32 v%d, v%d, v%d" % (t0 + 4, t0 + 4, t0 + 4))
    a("v_lshlrev_b32 v%d, 16, v%d" % (t0 + 4, t0 + 4))
    a("v_rcp_f32 v%d, v%d" % (t0 + 5, t0 + 4))
    a("s_nop 0")
    a("v_fma_f32 v%d, -v%d, v%d, 2.0" % (t0 + 4, t0 + 4, t0 + 5))
    a("v_mul_f32 v%d, v%d, v%d" % (t0 + 4, t0 + 4, t0 + 5))
    a("v_mov_b32 v%d, v%d" % (t0 + 5, t0 + 4))
    for j in range(5):
        x = X[j]
        a.csub(x, x, t0 + 6)
        a("v_cvt_pk_bf16_f32 v%d, v%d, v%d" % (x + 1, x, x + 1))
        a("v_lshlrev_b32 v%d, 16, v%d" % (x, x + 1))
        a("v_and_b32 v%d, 0xffff0000, v%d" % (x + 1, x + 1))
        a("v_pk_mul_f32 %s, %s, %s" % (a.P(x), a.P(x), a.P(t0 + 4)))
        a("v_cvt_pk_bf16_f32 v%d, v%d, v%d" % (t0 + 8 + j, x, x + 1))
        a("v_lshlrev_b32 v%d, 16, v%d" % (x, t0 + 8 + j))
        a("v_and_b32 v%d, 0xffff0000, v%d" % (x + 1, t0 + 8 + j))
    return [t0 + 8 + j for j in range(5)]


def fft_consts(a, s0):
    c = {}
    names = [("r2", 1 / math.sqrt(2)), ("c1", math.cos(2 * math.pi / 5)), ("c2", math.cos(4 * math.pi / 5)),
             ("s1", math.sin(2 * math.pi / 5)), ("s2", math.sin(4 * math.pi / 5))]
    for i, (n, v) in enumerate(names):
        c[n] = s0 + 2 * i
        a.sconst_pair(s0 + 2 * i, v)
    return c


def gen_k1(a):
    name = "k1_kernel"
    kernel_header(a, name)
    L_wt = a.newlabel("k1wt")
    L_end = a.newlabel("k1end")
    a("s_load_dwordx2 s[4:5], s[0:1], 0")
    a("s_load_dwordx4 s[8:11], s[0:1], 8")
    a("s_load_dwordx2 s[6:7], s[0:1], 72")
    a("v_and_b32 v1, 63, v0")
    a("v_lshrrev_b32 v2, 6, v0")
    a("s_nop 0")
    a("v_readfirstlane_b32 s3, v2")
    a("s_cmp_ge_u32 s2, 256")
    a("s_cbranch_scc1 %s" % L_wt)
    C = fft_consts(a, 40)
    a("s_mov_b32 s50, %s" % f32hex(1.0 / 640))
    a("s_lshl_b32 s12, s2, 3")
    a("s_add_u32 s12, s12, s3")
    a("s_mul_i32 s13, s12, 1280")
    a("v_lshlrev_b32 v3, 2, v1")
    a("s_waitcnt lgkmcnt(0)")
    a.srd(16, 4, X_BYTES)
    a.srd_off(20, 6, WS_ZT, ZT_BYTES)
    for j in range(5):
        a("buffer_load_dword v%d, v3, s[16:19], s13 offen offset:%d" % (5 + j, j * 256))
    W1 = [None, 40, 42, 44, 46]
    a("v_cvt_f32_u32 v4, v1")
    a("v_mul_f32 v10, %s, v4" % f32hex(-1.0 / 320))
    a.sincos_pair(40, 10)
    a("s_nop 0")
    a.twiddle_powers(W1, 4, 12)
    W2 = [None] + [48 + 2 * i for i in range(7)]
    a("v_and_b32 v10, 7, v1")
    a("v_cvt_f32_u32 v10, v10")
    a("v_mul_f32 v10, %s, v10" % f32hex(-1.0 / 64))
    a.sincos_pair(48, 10)
    a("s_nop 0")
    a.twiddle_powers(W2, 7, 12)
    W3 = [62 + 2 * j for j in range(5)]
    for j in range(5):
        a("v_mov_b32 v10, %s" % f32hex(64.0 * j / 640 + 0.5))
        a("v_fmac_f32 v10, %s, v4" % f32hex(1.0 / 640))
        a("v_sin_f32 v%d, v10" % W3[j])
        a("v_cos_f32 v%d, v10" % (W3[j] + 1))
    a("s_mul_i32 s14, s3, %d" % WSCR)
    a("v_lshlrev_b32 v72, 3, v1")
    a("v_add_u32 v72, s14, v72")
    a("v_lshrrev_b32 v73, 3, v1")
    a("v_mul_u32_u24 v74, 576, v73")
    a("v_and_b32 v75, 7, v1")
    a("v_lshlrev_b32 v76, 3, v75")
    a("v_add3_u32 v76, v74, v76, s14")
    a("v_mul_u32_u24 v77, 72, v75")
    a("v_add3_u32 v77, v74, v77, s14")
    a("v_mul_u32_u24 v78, 5, v75")
    a("v_add_u32 v78, v78, v73")
    a("v_lshlrev_b32 v78, 3, v78")
    a("v_add_u32 v78, s14, v78")
    a("v_sub_u32 v79, 320, v1")
    a("v_lshlrev_b32 v79, 3, v79")
    a("v_add_u32 v79, s14, v79")
    a("v_mul_u32_u24 v80, 80, v1")
    a("s_lshl_b32 s15, s3, 3")
    a("s_add_u32 s15, s15, %d" % TBASE)
    a("v_add_u32 v80, s15, v80")
    X = [14, 16, 18, 20, 22]
    a("s_waitcnt vmcnt(0)")
    for j in range(5):
        a("v_lshlrev_b32 v%d, 16, v%d" % (X[j], 5 + j))
        a("v_and_b32 v%d, 0xffff0000, v%d" % (X[j] + 1, 5 + j))
    emit_layernorm(a, X, 24, 38, 50)
    pool = [24, 26, 28, 30, 32, 34, 36, 38]
    A = a.radix5(X, pool, -1, C["c1"], C["c2"], C["s1"], C["s2"])
    t = pool.pop()
    for k1 in range(1, 5):
        a.cmul(A[k1], A[k1], W1[k1], t)
    pool.append(t)
    for k1 in range(5):
        a("ds_write_b64 v72, %s offset:%d" % (a.P(A[k1]), k1 * 576))
    pool += A
    a("s_waitcnt lgkmcnt(0)")
    B = [pool.pop() for _ in range(8)]
    for m1 in range(8):
        a("ds_read_b64 %s, v76 offset:%d" % (a.P(B[m1]), m1 * 64))
    a("s_waitcnt lgkmcnt(0)")
    B = a.radix8(B, pool, -1, C["r2"])
    t = pool.pop()
    for q1 in range(1, 8):
        a.cmul(B[q1], B[q1], W2[q1], t)
    pool.append(t)
    a("v_cmp_gt_u32 vcc, 40, v1")
    a("s_and_saveexec_b64 s[32:33], vcc")
    for q1 in range(8):
        a("ds_write_b64 v76, %s offset:%d" % (a.P(B[q1]), q1 * 72))
    a("s_mov_b64 exec, s[32:33]")
    pool += B
    a("s_waitcnt lgkmcnt(0)")
    B = [pool.pop() for _ in range(8)]
    for m2 in range(8):
        a("ds_read_b64 %s, v77 offset:%d" % (a.P(B[m2]), m2 * 8))
    a("s_waitcnt lgkmcnt(0)")
    B = a.radix8(B, pool, -1, C["r2"])
    a("s_mov_b64 exec, vcc")
    for q2 in range(8):
        a("ds_write_b64 v78, %s offset:%d" % (a.P(B[q2]), q2 * 320))
    a("s_mov_b64 exec, 1")
    a("ds_write_b64 v78, %s offset:%d" % (a.P(B[0]), 320 * 8))
    a("s_mov_b64 exec, s[32:33]")
    pool += B
    a("s_waitcnt lgkmcnt(0)")
    Zk = [pool.pop() for _ in range(5)]
    Zm = [pool.pop() for _ in range(5)]
    a("v_subrev_u32 v81, 2048, v79")
    for j in range(5):
        a("ds_read_b64 %s, v72 offset:%d" % (a.P(Zk[j]), j * 512))
        a("ds_read_b64 %s, v81 offset:%d" % (a.P(Zm[j]), 2048 - j * 512))
    a("s_waitcnt lgkmcnt(0)")
    S = pool.pop()
    t = pool.pop()
    for j in range(5):
        zk, zm = Zk[j], Zm[j]
        a("v_pk_add_f32 %s, %s, %s neg_hi:[0,1]" % (a.P(S), a.P(zk), a.P(zm)))
        a("v_pk_add_f32 %s, %s, %s neg_lo:[0,1]" % (a.P(zk), a.P(zk), a.P(zm)))
        if j == 0:
            a("v_sub_f32 v%d, v%d, v%d" % (zm, S, zk + 1))
            a("v_mov_b32 v%d, 0" % (zm + 1))
        a.cmul_acc(zk, zk, W3[j], S, t)
        a("ds_write_b64 v80, %s offset:%d" % (a.P(zk), j * 64 * 80))
        if j == 0:
            a("s_mov_b64 exec, 1")
            a("ds_write_b64 v80, %s offset:%d" % (a.P(zm), 320 * 80))
            a("s_mov_b64 exec, s[32:33]")
    a("s_waitcnt lgkmcnt(0)")
    a("s_barrier")
    a("v_lshrrev_b32 v4, 2, v0")
    a("v_and_b32 v5, 3, v0")
    a("v_mul_u32_u24 v6, 80, v4")
    a("v_lshlrev_b32 v5, 4, v5")
    a("v_add3_u32 v6, v6, v5, %d" % 0)
    a("v_add_u32 v6, %d, v6" % TBASE)
    a("v_lshlrev_b32 v7, 14, v4")
    a("v_add_u32 v7, v7, v5")
    a("s_lshl_b32 s13, s2, 6")
    for r in range(3):
        a("ds_read_b128 v[%d:%d], v6 offset:%d" % (8 + 4 * r, 11 + 4 * r, r * 128 * 80))
    a("s_add_u32 s24, s13, %d" % (128 * 16384))
    a("s_add_u32 s25, s13, %d" % (256 * 16384))
    a("s_waitcnt lgkmcnt(2)")
    a("buffer_store_dwordx4 v[8:11], v7, s[20:23], s13 offen")
    a("s_waitcnt lgkmcnt(1)")
    a("buffer_store_dwordx4 v[12:15], v7, s[20:23], s24 offen")
    a("s_waitcnt lgkmcnt(0)")
    a("v_cmp_gt_u32 vcc, %d, v0" % (1284 - 1024))
    a("s_and_saveexec_b64 s[32:33], vcc")
    a("buffer_store_dwordx4 v[16:19], v7, s[20:23], s25 offen")
    a("s_endpgm")
    a.label(L_wt)
    a("s_cmp_ge_u32 s2, %d" % (256 + K1_NWT))
    a("s_cbranch_scc1 %s" % L_end)
    a("s_sub_u32 s12, s2, 256")
    a("s_lshl_b32 s12, s12, 3")
    a("s_add_u32 s12, s12, s3")
    a("s_mul_i32 s13, s12, 43691")
    a("s_lshr_b32 s13, s13, 18")
    a("s_mul_i32 s14, s13, 6")
    a("s_sub_u32 s14, s12, s14")
    a("s_lshl_b32 s14, s14, 6")
    a("v_add_u32 v3, s14, v1")
    a("s_waitcnt lgkmcnt(0)")
    a.srd(16, 8, WF_BYTES)
    a.srd(20, 10, WF_BYTES)
    a.srd_off(24, 6, WS_WT, WT_BYTES)
    a("v_cmp_gt_u32 vcc, 321, v3")
    a("s_and_saveexec_b64 s[32:33], vcc")
    a("s_cbranch_execz %s" % L_end)
    a("v_lshlrev_b32 v4, 1, v3")
    a("v_lshlrev_b32 v5, 13, v3")
    a("s_lshl_b32 s28, s13, 2")
    a("s_and_b32 s29, s28, 7")
    a("s_lshl_b32 s29, s29, 6")
    a("s_lshr_b32 s30, s28, 3")
    a("s_and_b32 s30, s30, 7")
    a("s_lshl_b32 s30, s30, 3")
    a("s_lshr_b32 s31, s28, 6")
    a("s_add_u32 s29, s29, s30")
    a("s_add_u32 s29, s29, s31")
    a("s_mul_i32 s29, s29, 642")
    for i in range(4):
        for tt in range(4):
            k = 64 * i + 512 * tt
            a("s_add_u32 s34, s29, %d" % (k * 642))
            a("buffer_load_ushort v%d, v4, s[16:19], s34 offen" % (8 + 4 * i + tt))
            a("buffer_load_ushort v%d, v4, s[20:23], s34 offen" % (24 + 4 * i + tt))
    a("s_lshl_b32 s28, s28, 4")
    a("s_waitcnt vmcnt(0)")
    for i in range(16):
        a("v_lshl_or_b32 v%d, v%d, 16, v%d" % (8 + i, 24 + i, 8 + i))
    for i in range(4):
        a("buffer_store_dwordx4 v[%d:%d], v5, s[24:27], s28 offen offset:%d" % (8 + 4 * i, 11 + 4 * i, 16 * i))
    a.label(L_end)
    a("s_endpgm")
    return name, 84, 56


K2_PAD = 36
K2_BUF = 8 * 8 * K2_PAD * 8
K2_LDS = 2 * K2_BUF


def gen_k2(a, extra_path=None, n_extra=0):
    name = "k2_kernel"
    kernel_header(a, name)
    L_x = a.newlabel("k2x")
    L_end = a.newlabel("k2end")
    a("s_load_dwordx2 s[6:7], s[0:1], 72")
    a("s_cmp_ge_u32 s2, 321")
    a("s_cbranch_scc1 %s" % L_x)
    C = fft_consts(a, 40)
    a("s_lshl_b32 s12, s2, 14")
    a("s_lshl_b32 s13, s2, 13")
    a("v_lshlrev_b32 v1, 3, v0")
    a("v_lshlrev_b32 v2, 5, v0")
    a("s_waitcnt lgkmcnt(0)")
    a.srd_off(16, 6, WS_ZT, ZT_BYTES)
    a.srd_off(20, 6, WS_YT, ZT_BYTES)
    a.srd_off(24, 6, WS_WT, WT_BYTES)
    X = [4 + 2 * i for i in range(8)]
    for n1 in range(8):
        a("buffer_load_dwordx2 %s, v1, s[16:19], s12 offen offset:%d" % (a.P(X[n1]), (n1 * 2048) % 4096) if n1 < 2 else
          "buffer_load_dwordx2 %s, v1, s[16:19], s%d offen" % (a.P(X[n1]), 28 + n1))
        if n1 == 1:
            for m in range(2, 8):
                a("s_add_u32 s%d, s12, %d" % (28 + m, m * 2048))
    a("buffer_load_dwordx4 v[92:95], v2, s[24:27], s13 offen")
    a("buffer_load_dwordx4 v[96:99], v2, s[24:27], s13 offen offset:16")
    W1 = [None] + [40 + 2 * i for i in range(7)]
    W2 = [None] + [54 + 2 * i for i in range(7)]
    W3 = [None] + [68 + 2 * i for i in range(7)]
    a("v_cvt_f32_u32 v20, v0")
    a("v_mul_f32 v20, %s, v20" % f32hex(-1.0 / 2048))
    a.sincos_pair(40, 20)
    a("v_and_b32 v21, 31, v0")
    a("v_cvt_f32_u32 v20, v21")
    a("v_mul_f32 v20, %s, v20" % f32hex(-1.0 / 256))
    a.sincos_pair(54, 20)
    a("v_and_b32 v22, 3, v0")
    a("v_cvt_f32_u32 v20, v22")
    a("v_mul_f32 v20, %s, v20" % f32hex(-1.0 / 32))
    a.sincos_pair(68, 20)
    a("s_nop 0")
    a.twiddle_powers(W1, 7, 24)
    a.twiddle_powers(W2, 7, 24)
    a.twiddle_powers(W3, 7, 24)
    a("v_lshrrev_b32 v23, 5, v0")
    a("v_mul_u32_u24 v82, 36, v23")
    a("v_add_u32 v82, v82, v21")
    a("v_lshlrev_b32 v82, 3, v82")
    a("v_mul_u32_u24 v83, 288, v23")
    a("v_add_u32 v84, v83, v22")
    a("v_add_u32 v83, v83, v21")
    a("v_lshlrev_b32 v83, 3, v83")
    a("v_bfe_u32 v24, v0, 2, 3")
    a("v_mul_u32_u24 v24, 36, v24")
    a("v_add_u32 v84, v84, v24")
    a("v_mul_u32_u24 v85, 7, v22")
    a("v_add_u32 v85, v85, v84")
    a("v_lshlrev_b32 v84, 3, v84")
    a("v_lshlrev_b32 v85, 3, v85")
    pool = [20, 22, 24, 26, 28, 30, 32, 34, 36, 38]
    buf = [0]

    def exch(regs, waddr, wstride, raddr, rstride):
        b = buf[0] * K2_BUF
        buf[0] ^= 1
        for i, r in enumerate(regs):
            a("ds_write_b64 v%d, %s offset:%d" % (waddr, a.P(r), b + i * wstride))
        a("s_waitcnt lgkmcnt(0)")
        a("s_barrier")
        for i, r in enumerate(regs):
            a("ds_read_b64 %s, v%d offset:%d" % (a.P(r), raddr, b + i * rstride))
        a("s_waitcnt lgkmcnt(0)")

    def twid(regs, W, conj):
        t = pool.pop()
        for i in range(1, 8):
            a.cmul(regs[i], regs[i], W[i], t, conj=conj)
        pool.append(t)

    a("s_waitcnt vmcnt(2)")
    R = a.radix8(X, pool, -1, C["r2"])
    twid(R, W1, False)
    exch(R, 82, 2304, 83, 288)
    R = a.radix8(R, pool, -1, C["r2"])
    twid(R, W2, False)
    exch(R, 83, 288, 84, 32)
    R = a.radix8(R, pool, -1, C["r2"])
    twid(R, W3, False)
    exch(R, 84, 32, 85, 8)
    Ra = a.radix4(R[0:4], pool, -1)
    Rb = a.radix4(R[4:8], pool, -1)
    R = Ra + Rb
    a("s_waitcnt vmcnt(0)")
    t = pool.pop()
    w = pool.pop()
    for i in range(8):
        a("v_lshlrev_b32 v%d, 16, v%d" % (w, 92 + i))
        a("v_and_b32 v%d, 0xffff0000, v%d" % (w + 1, 92 + i))
        a.cmul(R[i], R[i], w, t)
    pool.append(t)
    pool.append(w)
    Ra = a.radix4(R[0:4], pool, +1)
    Rb = a.radix4(R[4:8], pool, +1)
    R = Ra + Rb
    exch(R, 85, 8, 84, 32)
    twid(R, W3, True)
    R = a.radix8(R, pool, +1, C["r2"])
    exch(R, 84, 32, 83, 288)
    twid(R, W2, True)
    R = a.radix8(R, pool, +1, C["r2"])
    exch(R, 83, 288, 82, 2304)
    twid(R, W1, True)
    R = a.radix8(R, pool, +1, C["r2"])
    for n1 in range(8):
        if n1 < 2:
            a("buffer_store_dwordx2 %s, v1, s[20:23], s12 offen offset:%d" % (a.P(R[n1]), n1 * 2048))
        else:
            a("buffer_store_dwordx2 %s, v1, s[20:23], s%d offen" % (a.P(R[n1]), 28 + n1))
    a("s_endpgm")
    a.label(L_x)
    if extra_path is not None:
        extra_path(a, L_end)
    a.label(L_end)
    a("s_endpgm")
    return name, 100, 56


def gen_k3(a):
    name = "k3_kernel"
    kernel_header(a, name)
    L_end = a.newlabel("k3end")
    a("s_cmp_ge_u32 s2, 256")
    a("s_cbranch_scc1 %s" % L_end)
    a("s_load_dwordx2 s[4:5], s[0:1], 0")
    a("s_load_dwordx2 s[6:7], s[0:1], 72")
    a("v_and_b32 v1, 63, v0")
    a("v_lshrrev_b32 v2, 6, v0")
    a("s_nop 0")
    a("v_readfirstlane_b32 s3, v2")
    C = fft_consts(a, 40)
    a("s_mov_b32 s50, %s" % f32hex(1.0 / 640))
    a.sconst_pair(52, 1.0 / (640.0 * 2048.0 * 2.0))
    a("s_lshl_b32 s12, s2, 3")
    a("s_add_u32 s12, s12, s3")
    a("s_mul_i32 s13, s12, 1280")
    a("v_lshlrev_b32 v3, 2, v1")
    a("v_lshrrev_b32 v4, 2, v0")
    a("v_and_b32 v5, 3, v0")
    a("v_mul_u32_u24 v6, 80, v4")
    a("v_lshlrev_b32 v5, 4, v5")
    a("v_add_u32 v6, v6, v5")
    a("v_add_u32 v6, %d, v6" % TBASE)
    a("v_lshlrev_b32 v7, 14, v4")
    a("v_add_u32 v7, v7, v5")
    a("s_lshl_b32 s34, s2, 6")
    a("s_add_u32 s35, s34, %d" % (128 * 16384))
    a("s_add_u32 s36, s34, %d" % (256 * 16384))
    a("s_waitcnt lgkmcnt(0)")
    a.srd(16, 4, X_BYTES)
    a.srd_off(20, 6, WS_YT, ZT_BYTES)
    a.srd_off(24, 6, WS_H, X_BYTES)
    a.srd_off(28, 6, WS_LN2F, X_BYTES)
    a("buffer_load_dwordx4 v[8:11], v7, s[20:23], s34 offen")
    a("buffer_load_dwordx4 v[12:15], v7, s[20:23], s35 offen")
    a("buffer_load_dwordx4 v[16:19], v7, s[20:23], s36 offen")
    for j in range(5):
        a("buffer_load_dword v%d, v3, s[16:19], s13 offen offset:%d" % (84 + j, j * 256))
    W1 = [None, 40, 42, 44, 46]
    a("v_cvt_f32_u32 v20, v1")
    a("v_mul_f32 v21, %s, v20" % f32hex(-1.0 / 320))
    a.sincos_pair(40, 21)
    a("s_nop 0")
    a.twiddle_powers(W1, 4, 22)
    W2 = [None] + [48 + 2 * i for i in range(7)]
    a("v_and_b32 v21, 7, v1")
    a("v_cvt_f32_u32 v21, v21")
    a("v_mul_f32 v21, %s, v21" % f32hex(-1.0 / 64))
    a.sincos_pair(48, 21)
    a("s_nop 0")
    a.twiddle_powers(W2, 7, 22)
    W3 = [62 + 2 * j for j in range(5)]
    for j in range(5):
        a("v_mov_b32 v21, %s" % f32hex(-64.0 * j / 640))
        a("v_fmac_f32 v21, %s, v20" % f32hex(-1.0 / 640))
        a("v_sin_f32 v%d, v21" % W3[j])
        a("v_cos_f32 v%d, v21" % (W3[j] + 1))
    a("s_mul_i32 s14, s3, %d" % WSCR)
    a("v_lshlrev_b32 v72, 3, v1")
    a("v_add_u32 v72, s14, v72")
    a("v_lshrrev_b32 v73, 3, v1")
    a("v_mul_u32_u24 v74, 576, v73")
    a("v_and_b32 v75, 7, v1")
    a("v_lshlrev_b32 v76, 3, v75")
    a("v_add3_u32 v76, v74, v76, s14")
    a("v_mul_u32_u24 v77, 72, v75")
    a("v_add3_u32 v77, v74, v77, s14")
    a("v_mul_u32_u24 v78, 5, v75")
    a("v_add_u32 v78, v78, v73")
    a("v_lshlrev_b32 v78, 3, v78")
    a("v_add_u32 v78, s14, v78")
    a("s_lshl_b32 s15, s3, 3")
    a("s_add_u32 s15, s15, %d" % TBASE)
    a("v_mul_u32_u24 v80, 80, v1")
    a("v_add_u32 v80, s15, v80")
    a("v_sub_u32 v81, 64, v1")
    a("v_mul_u32_u24 v81, 80, v81")
    a("v_add_u32 v81, s15, v81")
    a("v_cmp_gt_u32 vcc, %d, v0" % (1284 - 1024))
    a("s_and_saveexec_b64 s[32:33], vcc")
    a("s_waitcnt vmcnt(5)")
    a("ds_write_b128 v6, v[16:19] offset:%d" % (2 * 128 * 80))
    a("s_mov_b64 exec, s[32:33]")
    a("ds_write_b128 v6, v[8:11]")
    a("ds_write_b128 v6, v[12:15] offset:%d" % (128 * 80))
    a("s_waitcnt lgkmcnt(0)")
    a("s_barrier")
    pool = [8, 10, 12, 14, 16, 18, 20, 22, 24, 26, 28, 30, 32, 34, 36, 38]
    Yk = [pool.pop() for _ in range(5)]
    Ym = [pool.pop() for _ in range(5)]
    for j in range(5):
        a("ds_read_b64 %s, v80 offset:%d" % (a.P(Yk[j]), j * 5120))
        a("ds_read_b64 %s, v81 offset:%d" % (a.P(Ym[j]), (4 - j) * 5120))
    a("s_waitcnt lgkmcnt(0)")
    a("s_mov_b64 exec, 1")
    a("v_mov_b32 v%d, 0" % (Yk[0] + 1))
    a("v_mov_b32 v%d, 0" % (Ym[0] + 1))
    a("s_mov_b64 exec, s[32:33]")
    S = pool.pop()
    t = pool.pop()
    for j in range(5):
        yk, ym = Yk[j], Ym[j]
        a("v_pk_add_f32 %s, %s, %s neg_hi:[0,1]" % (a.P(S), a.P(yk), a.P(ym)))
        a("v_pk_add_f32 %s, %s, %s neg_lo:[0,1]" % (a.P(yk), a.P(yk), a.P(ym)))
        a.cmul_acc(yk, yk, W3[j], S, t)
        a("ds_write_b64 v72, %s offset:%d" % (a.P(yk), j * 512))
    pool += [S, t] + Yk + Ym
    a("s_waitcnt lgkmcnt(0)")
    B = [pool.pop() for _ in range(8)]
    for q2 in range(8):
        a("ds_read_b64 %s, v78 offset:%d" % (a.P(B[q2]), q2 * 320))
    a("s_waitcnt lgkmcnt(0)")
    B = a.radix8(B, pool, +1, C["r2"])
    t = pool.pop()
    for m2 in range(1, 8):
        a.cmul(B[m2], B[m2], W2[m2], t, conj=True)
    pool.append(t)
    a("v_cmp_gt_u32 vcc, 40, v1")
    a("s_and_saveexec_b64 s[32:33], vcc")
    for m2 in range(8):
        a("ds_write_b64 v77, %s offset:%d" % (a.P(B[m2]), m2 * 8))
    a("s_mov_b64 exec, s[32:33]")
    pool += B
    a("s_waitcnt lgkmcnt(0)")
    B = [pool.pop() for _ in range(8)]
    for q1 in range(8):
        a("ds_read_b64 %s, v76 offset:%d" % (a.P(B[q1]), q1 * 72))
    a("s_waitcnt lgkmcnt(0)")
    B = a.radix8(B, pool, +1, C["r2"])
    a("s_mov_b64 exec, vcc")
    for m1 in range(8):
        a("ds_write_b64 v76, %s offset:%d" % (a.P(B[m1]), m1 * 64))
    a("s_mov_b64 exec, s[32:33]")
    pool += B
    a("s_waitcnt lgkmcnt(0)")
    A = [pool.pop() for _ in range(5)]
    for k1 in range(5):
        a("ds_read_b64 %s, v72 offset:%d" % (a.P(A[k1]), k1 * 576))
    a("s_waitcnt lgkmcnt(0)")
    t = pool.pop()
    for k1 in range(1, 5):
        a.cmul(A[k1], A[k1], W1[k1], t, conj=True)
    pool.append(t)
    Z = a.radix5(A, pool, +1, C["c1"], C["c2"], C["s1"], C["s2"])
    a("s_waitcnt vmcnt(0)")
    t = pool.pop()
    for j in range(5):
        z = Z[j]
        a.cmul_real(z, z, 52)
        a("v_cvt_pk_bf16_f32 v%d, v%d, v%d" % (z + 1, z, z + 1))
        a("v_lshlrev_b32 v%d, 16, v%d" % (z, z + 1))
        a("v_and_b32 v%d, 0xffff0000, v%d" % (z + 1, z + 1))
        a("v_lshlrev_b32 v%d, 16, v%d" % (t, 84 + j))
        a("v_and_b32 v%d, 0xffff0000, v%d" % (t + 1, 84 + j))
        a.cadd(z, z, t)
        a("v_cvt_pk_bf16_f32 v%d, v%d, v%d" % (84 + j, z, z + 1))
        a("v_lshlrev_b32 v%d, 16, v%d" % (z, 84 + j))
        a("v_and_b32 v%d, 0xffff0000, v%d" % (z + 1, 84 + j))
        a("buffer_store_dword v%d, v3, s[24:27], s13 offen offset:%d" % (84 + j, j * 256))
    pk = emit_layernorm(a, Z, 40, 38, 50)
    a("v_lshrrev_b32 v60, 3, v1")
    a("v_lshlrev_b32 v60, 10, v60")
    a("v_bfe_u32 v61, v1, 2, 1")
    a("v_lshlrev_b32 v61, 9, v61")
    a("v_and_b32 v62, 3, v1")
    a("v_lshlrev_b32 v62, 2, v62")
    a("v_add3_u32 v60, v60, v61, v62")
    a("s_lshr_b32 s36, s12, 5")
    a("s_mul_i32 s36, s36, 40960")
    a("s_and_b32 s37, s12, 31")
    a("s_lshl_b32 s37, s37, 4")
    a("s_add_u32 s36, s36, s37")
    for j in range(5):
        a("s_add_u32 s37, s36, %d" % (j * 8192))
        a("buffer_store_dword v%d, v60, s[28:31], s37 offen" % pk[j])
    a.label(L_end)
    a("s_endpgm")
    return name, 92, 56
```

```python
import math
from asmlib import *
from fft_kernels import *

WS_BYTES = 0x10000000
K2_NEXTRA = 360


def relayout_path(a, L_end):
    L_wd = a.newlabel("rl_wd")
    a("s_cmp_ge_u32 s2, %d" % (321 + K2_NEXTRA))
    a("s_cbranch_scc1 %s" % L_end)
    a("s_load_dwordx4 s[8:11], s[0:1], 32")
    a("s_load_dwordx2 s[12:13], s[0:1], 48")
    a("v_and_b32 v1, 63, v0")
    a("v_lshrrev_b32 v2, 6, v0")
    a("s_nop 0")
    a("v_readfirstlane_b32 s3, v2")
    a("s_sub_u32 s14, s2, 321")
    a("s_lshl_b32 s14, s14, 2")
    a("s_add_u32 s14, s14, s3")
    a("v_and_b32 v3, 15, v1")
    a("v_lshrrev_b32 v4, 4, v1")
    a("s_waitcnt lgkmcnt(0)")
    a.srd(28, 6, WS_BYTES)
    a("s_cmp_ge_u32 s14, 960")
    a("s_cbranch_scc1 %s" % L_wd)
    L_up = a.newlabel("rl_up")
    L_go = a.newlabel("rl_go")
    a("s_cmp_ge_u32 s14, 480")
    a("s_cbranch_scc1 %s" % L_up)
    a.srd(16, 8, 640 * 1536 * 2)
    a("s_mov_b32 s15, 0")
    a("s_branch %s" % L_go)
    a.label(L_up)
    a.srd(16, 10, 640 * 1536 * 2)
    a("s_mov_b32 s15, 1")
    a("s_sub_u32 s14, s14, 480")
    a.label(L_go)
    a("s_mul_i32 s20, s14, 52429")
    a("s_lshr_b32 s20, s20, 18")
    a("s_mul_i32 s21, s20, 5")
    a("s_sub_u32 s21, s14, s21")
    a("s_lshl_b32 s21, s21, 2")
    a("v_mul_u32_u24 v5, 24576, v4")
    a("v_lshl_add_u32 v5, v3, 1, v5")
    a("s_mul_i32 s22, s21, 98304")
    a("s_lshl_b32 s23, s20, 5")
    a("s_add_u32 s22, s22, s23")
    for i in range(4):
        for j in range(8):
            a("s_add_u32 s24, s22, %d" % (i * 98304 + j * 3072))
            a("buffer_load_ushort v%d, v5, s[16:19], s24 offen" % ((24 if j & 1 else 8) + 4 * i + j // 2))
    a("v_lshrrev_b32 v6, 1, v4")
    a("v_lshlrev_b32 v6, 10, v6")
    a("v_and_b32 v7, 1, v4")
    a("v_lshlrev_b32 v7, 9, v7")
    a("v_lshl_add_u32 v6, v3, 4, v6")
    a("v_add_u32 v6, v6, v7")
    a("s_mul_i32 s22, s20, 40960")
    a("s_lshl_b32 s23, s21, 11")
    a("s_add_u32 s22, s22, s23")
    a("s_lshl_b32 s23, s15, 8")
    a("s_add_u32 s22, s22, s23")
    a("s_add_u32 s22, s22, 0x%x" % WS_WGU)
    a("s_waitcnt vmcnt(0)")
    for i in range(16):
        a("v_lshl_or_b32 v%d, v%d, 16, v%d" % (8 + i, 24 + i, 8 + i))
    for i in range(4):
        a("s_add_u32 s24, s22, %d" % (i * 2048))
        a("buffer_store_dwordx4 v[%d:%d], v6, s[28:31], s24 offen" % (8 + 4 * i, 11 + 4 * i))
    a("s_endpgm")
    a.label(L_wd)
    a.srd(16, 12, 1536 * 640 * 2)
    a("s_sub_u32 s14, s14, 960")
    a("s_mul_i32 s20, s14, 21846")
    a("s_lshr_b32 s20, s20, 18")
    a("s_mul_i32 s21, s20, 12")
    a("s_sub_u32 s21, s14, s21")
    a("s_lshl_b32 s21, s21, 2")
    a("v_mul_u32_u24 v5, 10240, v4")
    a("v_lshl_add_u32 v5, v3, 1, v5")
    a("s_mul_i32 s22, s21, 40960")
    a("s_lshl_b32 s23, s20, 5")
    a("s_add_u32 s22, s22, s23")
    for i in range(4):
        for j in range(8):
            a("s_add_u32 s24, s22, %d" % (i * 40960 + j * 1280))
            a("buffer_load_ushort v%d, v5, s[16:19], s24 offen" % ((24 if j & 1 else 8) + 4 * i + j // 2))
    a("v_lshlrev_b32 v6, 4, v1")
    a("s_mul_i32 s22, s20, 48")
    a("s_add_u32 s22, s22, s21")
    a("s_lshl_b32 s22, s22, 10")
    a("s_add_u32 s22, s22, 0x%x" % WS_WDF)
    a("s_waitcnt vmcnt(0)")
    for i in range(16):
        a("v_lshl_or_b32 v%d, v%d, 16, v%d" % (8 + i, 24 + i, 8 + i))
    for i in range(4):
        a("buffer_store_dwordx4 v[%d:%d], v6, s[28:31], s22 offen offset:%d" % (8 + 4 * i, 11 + 4 * i, i * 1024))


K4_STAGE = 40960
K4_LDS = 3 * K4_STAGE


def gen_k4(a):
    name = "k4_kernel"
    kernel_header(a, name)
    L_end = a.newlabel("k4end")
    a("s_cmp_ge_u32 s2, 256")
    a("s_cbranch_scc1 %s" % L_end)
    a("s_load_dwordx2 s[6:7], s[0:1], 72")
    a("v_and_b32 v1, 63, v0")
    a("v_lshrrev_b32 v2, 6, v0")
    a("s_nop 0")
    a("v_readfirstlane_b32 s3, v2")
    a("s_and_b32 s8, s2, 15")
    a("s_lshr_b32 s9, s2, 4")
    a("s_lshr_b32 s10, s3, 1")
    a("s_and_b32 s11, s3, 1")
    a("v_lshlrev_b32 v3, 4, v1")
    a("s_lshl_b32 s12, s3, 10")
    a("v_add_u32 v4, s12, v3")
    a("s_mul_i32 s13, s9, %d" % (4 * 40960))
    a("s_add_u32 s13, s13, 0x%x" % WS_LN2F)
    for c in range(4):
        a("s_add_u32 s%d, s13, %d" % (20 + c, c * 40960))
    a("s_mul_i32 s13, s8, %d" % (6 * 40960))
    a("s_add_u32 s13, s13, 0x%x" % WS_WGU)
    for c in range(6):
        a("s_add_u32 s%d, s13, %d" % (24 + c, c * 40960))
    a("s_lshl_b32 s13, s10, 13")
    a("v_add_u32 v5, s13, v3")
    a("v_add_u32 v6, %d, v5" % K4_STAGE)
    a("v_add_u32 v7, %d, v5" % (2 * K4_STAGE))
    a("s_mul_i32 s13, s11, 12288")
    a("s_add_u32 s13, s13, 16384")
    a("v_add_u32 v8, s13, v3")
    a("v_add_u32 v9, %d, v8" % K4_STAGE)
    a("v_add_u32 v10, %d, v8" % (2 * K4_STAGE))
    a("s_waitcnt lgkmcnt(0)")
    a.srd(16, 6, WS_BYTES)
    ACC = 64
    FR = [[16 + 20 * s + 4 * i for i in range(5)] for s in range(2)]

    def dma(stage):
        slot = stage % 3
        for c in range(10):
            a("s_add_u32 m0, s12, %d" % (slot * K4_STAGE + c * 4096))
            a("s_nop 0")
            a("buffer_load_dwordx4 v4, s[16:19], s%d offen lds" % (20 + c))
        for c in range(10):
            a("s_add_u32 s%d, s%d, 4096" % (20 + c, 20 + c))

    def reads(stage, kb, st):
        slot = stage % 3
        f = FR[st]
        for i in range(2):
            a("ds_read_b128 v[%d:%d], v%d offset:%d" % (f[i], f[i] + 3, 5 + slot, i * 4096 + kb * 1024))
        for i in range(3):
            a("ds_read_b128 v[%d:%d], v%d offset:%d" % (f[2 + i], f[2 + i] + 3, 8 + slot, i * 4096 + kb * 1024))

    def mfmas(st, first):
        f = FR[st]
        for i in range(2):
            for j in range(3):
                acc = ACC + 16 * (i * 3 + j)
                c = "0" if first else "v[%d:%d]" % (acc, acc + 15)
                a("v_mfma_f32_32x32x16_bf16 v[%d:%d], v[%d:%d], v[%d:%d], %s"
                  % (acc, acc + 15, f[2 + j], f[2 + j] + 3, f[i], f[i] + 3, c))

    dma(0)
    dma(1)
    st = 0
    for s in range(10):
        a("s_waitcnt vmcnt(%d)" % (10 if s + 1 < 10 else 0))
        a("s_barrier")
        reads(s, 0, st)
        if s + 2 < 10:
            dma(s + 2)
        for kb in range(4):
            if kb < 3:
                reads(s, kb + 1, st ^ 1)
                a("s_waitcnt lgkmcnt(5)")
            else:
                a("s_waitcnt lgkmcnt(0)")
            mfmas(st, s == 0 and kb == 0)
            st ^= 1
    a("s_nop 15")
    a("v_bfe_u32 v11, v1, 4, 1")
    a("v_mul_u32_u24 v11, 49152, v11")
    a("v_and_b32 v12, 15, v1")
    a("v_lshl_add_u32 v11, v12, 4, v11")
    a("v_lshrrev_b32 v12, 5, v1")
    a("v_lshl_add_u32 v11, v12, 3, v11")
    a("s_lshl_b32 s13, s9, 2")
    a("s_lshl_b32 s14, s10, 1")
    a("s_add_u32 s13, s13, s14")
    a("s_mul_i32 s13, s13, 98304")
    a("s_add_u32 s13, s13, 0x%x" % WS_ACTF)
    a("s_mul_i32 s14, s8, 6")
    a("s_mul_i32 s15, s11, 3")
    a("s_add_u32 s14, s14, s15")
    a("s_mov_b32 s40, %s" % f32hex(0.044715))
    a("s_mov_b32 s41, %s" % f32hex(0.044715))
    k = -2.0 * math.sqrt(2.0 / math.pi) * math.log2(math.e)
    a("s_mov_b32 s42, %s" % f32hex(k))
    a("s_mov_b32 s43, %s" % f32hex(k))
    a("s_mov_b32 s44, 1.0")
    a("s_mov_b32 s45, 1.0")
    T = 16
    for j in range(3):
        a("s_add_u32 s15, s14, %d" % j)
        a("s_lshl_b32 s15, s15, 9")
        for i in range(2):
            acc = ACC + 16 * (i * 3 + j)
            for p in range(4):
                g = acc + 2 * p
                u = acc + 8 + 2 * p
                t0, t1, t2 = T, T + 2, T + 4
                a("v_cvt_pk_bf16_f32 v%d, v%d, v%d" % (t0 + 1, g, g + 1))
                a("v_cvt_pk_bf16_f32 v%d, v%d, v%d" % (t1 + 1, u, u + 1))
                a("v_lshlrev_b32 v%d, 16, v%d" % (t0, t0 + 1))
                a("v_and_b32 v%d, 0xffff0000, v%d" % (t0 + 1, t0 + 1))
                a("v_lshlrev_b32 v%d, 16, v%d" % (t1, t1 + 1))
                a("v_and_b32 v%d, 0xffff0000, v%d" % (t1 + 1, t1 + 1))
                a("v_pk_mul_f32 %s, %s, %s" % (a.P(t2), a.P(t0), a.P(t0)))
                a("v_pk_fma_f32 %s, %s, s[40:41], s[44:45]" % (a.P(t2), a.P(t2)) if False else
                  "v_pk_mul_f32 %s, %s, s[40:41]" % (a.P(t2), a.P(t2)))
                a("v_pk_fma_f32 %s, %s, %s, %s" % (a.P(t2), a.P(t2), a.P(t0), a.P(t0)))
                a("v_pk_mul_f32 %s, %s, s[42:43]" % (a.P(t2), a.P(t2)))
                a("v_exp_f32 v%d, v%d" % (t2, t2))
                a("v_exp_f32 v%d, v%d" % (t2 + 1, t2 + 1))
                a("s_nop 0")
                a("v_pk_add_f32 %s, %s, s[44:45]" % (a.P(t2), a.P(t2)))
                a("v_rcp_f32 v%d, v%d" % (t2, t2))
                a("v_rcp_f32 v%d, v%d" % (t2 + 1, t2 + 1))
                a("s_nop 0")
                a("v_pk_mul_f32 %s, %s, %s" % (a.P(t2), a.P(t2), a.P(t0)))
                a("v_cvt_pk_bf16_f32 v%d, v%d, v%d" % (t2 + 1, t2, t2 + 1))
                a("v_lshlrev_b32 v%d, 16, v%d" % (t2, t2 + 1))
                a("v_and_b32 v%d, 0xffff0000, v%d" % (t2 + 1, t2 + 1))
                a("v_pk_mul_f32 %s, %s, %s" % (a.P(t2), a.P(t2), a.P(t1)))
                a("v_cvt_pk_bf16_f32 v%d, v%d, v%d" % (acc + p, t2, t2 + 1))
            a("s_add_u32 s46, s13, s15")
            if i == 1:
                a("s_add_u32 s46, s46, 98304")
            a("buffer_store_dwordx2 v[%d:%d], v11, s[16:19], s46 offen" % (acc, acc + 1))
            a("buffer_store_dwordx2 v[%d:%d], v11, s[16:19], s46 offen offset:256" % (acc + 2, acc + 3))
    a.label(L_end)
    a("s_endpgm")
    return name, 160, 56


K5_LDS = 4 * 20 * 1024
K5_DEPTH = 6


def gen_k5(a):
    name = "k5_kernel"
    kernel_header(a, name)
    L_end = a.newlabel("k5end")
    a("s_cmp_ge_u32 s2, 256")
    a("s_cbranch_scc1 %s" % L_end)
    a("s_load_dwordx2 s[6:7], s[0:1], 72")
    a("s_load_dwordx2 s[4:5], s[0:1], 56")
    a("v_and_b32 v1, 63, v0")
    a("v_lshrrev_b32 v2, 6, v0")
    a("s_nop 0")
    a("v_readfirstlane_b32 s3, v2")
    a("s_and_b32 s8, s2, 7")
    a("s_lshr_b32 s9, s2, 3")
    a("v_lshlrev_b32 v3, 4, v1")
    a("s_mul_i32 s12, s3, 12288")
    a("s_mul_i32 s13, s9, %d" % (4 * 49152))
    a("s_add_u32 s13, s13, s12")
    a("s_add_u32 s13, s13, 0x%x" % WS_ACTF)
    for i in range(4):
        a("s_add_u32 s%d, s13, %d" % (20 + i, i * 49152))
    a("s_mul_i32 s13, s8, %d" % (5 * 49152))
    a("s_add_u32 s13, s13, s12")
    a("s_add_u32 s13, s13, 0x%x" % WS_WDF)
    for j in range(5):
        a("s_add_u32 s%d, s13, %d" % (24 + j, j * 49152))
    a("s_waitcnt lgkmcnt(0)")
    a.srd(16, 6, WS_BYTES)
    a.srd(32, 4, X_BYTES)
    D = K5_DEPTH
    FB = 16

    def loads(step):
        slot = step % D
        if step and step % 4 == 0:
            for i in range(9):
                a("s_add_u32 s%d, s%d, 4096" % (20 + i, 20 + i))
        for i in range(9):
            r = FB + 36 * slot + 4 * i
            a("buffer_load_dwordx4 v[%d:%d], v3, s[16:19], s%d offen offset:%d" % (r, r + 3, 20 + i, (step % 4) * 1024))

    for s in range(D):
        loads(s)
    a("v_and_b32 v4, 15, v1")
    a("v_mul_u32_u24 v4, 1280, v4")
    a("v_lshrrev_b32 v5, 4, v1")
    a("v_lshl_add_u32 v4, v5, 3, v4")
    a("s_lshl_b32 s13, s9, 2")
    a("s_add_u32 s13, s13, s3")
    a("s_mul_i32 s13, s13, 20480")
    a("s_mul_i32 s14, s8, 160")
    a("s_add_u32 s13, s13, s14")
    a("s_add_u32 s14, s13, 0x%x" % WS_H)
    for s in range(12):
        rem = min(12, s + D) - (s + 1)
        a("s_waitcnt vmcnt(%d)" % (9 * rem))
        slot = s % D
        for i in range(4):
            for j in range(5):
                acc = 4 * (i * 5 + j)
                ra = FB + 36 * slot + 4 * (4 + j)
                rb = FB + 36 * slot + 4 * i
                c = "0" if s == 0 else "a[%d:%d]" % (acc, acc + 3)
                a("v_mfma_f32_16x16x32_bf16 a[%d:%d], v[%d:%d], v[%d:%d], %s" % (acc, acc + 3, ra, ra + 3, rb, rb + 3, c))
        if s + D < 12:
            loads(s + D)
    for j in range(5):
        a("buffer_load_dwordx2 v[%d:%d], v4, s[16:19], s14 offen offset:%d" % (6 + 2 * j, 7 + 2 * j, j * 32))
    a("s_nop 7")
    a("s_mul_i32 s15, s3, 20480")
    a("v_add_u32 v5, s15, v3")
    L_skip = []
    for i in range(4):
        lab = a.newlabel("k5sk")
        a("s_cmp_eq_u32 s3, %d" % i)
        a("s_cbranch_scc1 %s" % lab)
        for j in range(5):
            t = i * 5 + j
            a("ds_write_b128 v5, a[%d:%d] offset:%d" % (4 * t, 4 * t + 3, t * 1024))
        a.label(lab)
    L_done = a.newlabel("k5own")
    for i in range(4):
        lab = a.newlabel("k5o")
        a("s_cmp_lg_u32 s3, %d" % i)
        a("s_cbranch_scc1 %s" % lab)
        for r in range(20):
            a("v_accvgpr_read_b32 v%d, a%d" % (16 + r, 20 * i + r))
        a("s_branch %s" % L_done)
        a.label(lab)
    a.label(L_done)
    a("s_waitcnt lgkmcnt(0)")
    a("s_barrier")
    a("s_mul_i32 s15, s3, 5120")
    a("v_add_u32 v5, s15, v3")
    for o in range(1, 4):
        a("s_add_u32 s22, s3, %d" % o)
        a("s_and_b32 s22, s22, 3")
        a("s_mul_i32 s22, s22, 20480")
        a("v_add_u32 v%d, s22, v5" % (36 + o))
    for o in range(1, 4):
        for j in range(5):
            r = 40 + 20 * (o - 1) + 4 * j
            a("ds_read_b128 v[%d:%d], v%d offset:%d" % (r, r + 3, 36 + o, j * 1024))
    a("s_waitcnt lgkmcnt(0)")
    for o in range(1, 4):
        for q in range(10):
            a.cadd(16 + 2 * q, 16 + 2 * q, 40 + 20 * (o - 1) + 2 * q)
    a("s_waitcnt vmcnt(0)")
    for j in range(5):
        for p in range(2):
            d = 16 + 4 * j + 2 * p
            h = 6 + 2 * j + p
            a("v_cvt_pk_bf16_f32 v%d, v%d, v%d" % (d + 1, d, d + 1))
            a("v_lshlrev_b32 v%d, 16, v%d" % (d, d + 1))
            a("v_and_b32 v%d, 0xffff0000, v%d" % (d + 1, d + 1))
            a("v_lshlrev_b32 v40, 16, v%d" % h)
            a("v_and_b32 v41, 0xffff0000, v%d" % h)
            a.cadd(d, d, 40)
            a("v_cvt_pk_bf16_f32 v%d, v%d, v%d" % (h, d, d + 1))
        a("buffer_store_dwordx2 v[%d:%d], v4, s[32:35], s13 offen offset:%d" % (6 + 2 * j, 7 + 2 * j, j * 32))
    a.label(L_end)
    a("s_endpgm")
    return name, FB + 36 * D, 56, 80
```

```python
import sys
from asmlib import *
from fft_kernels import *
from gemm_kernels import *

def main(out):
    a = Asm()
    a.stamps_on = len(sys.argv) > 2 and sys.argv[2] == "stamp"
    a.raw("; @launch kernel=k1_kernel grid=(%d,1,1) block=(512,1,1) lds=%d" % (256 + K1_NWT, K13_LDS))
    a.raw("; @launch kernel=k2_kernel grid=(%d,1,1) block=(256,1,1) lds=%d" % (321 + K2_NEXTRA, K2_LDS))
    a.raw("; @launch kernel=k3_kernel grid=(256,1,1) block=(512,1,1) lds=%d" % K13_LDS)
    a.raw("; @launch kernel=k4_kernel grid=(256,1,1) block=(512,1,1) lds=%d" % K4_LDS)
    a.raw("; @launch kernel=k5_kernel grid=(256,1,1) block=(256,1,1) lds=%d" % K5_LDS)
    a.raw('.amdgcn_target "amdgcn-amd-amdhsa--gfx950"')
    a.raw(".text")
    ks = []
    ks.append(gen_k1(a))
    ks.append(gen_k2(a, relayout_path, K2_NEXTRA))
    ks.append(gen_k3(a))
    ks.append(gen_k4(a))
    ks.append(gen_k5(a))
    a.raw('.section .rodata,"a"')
    for k in ks:
        if len(k) == 3:
            kernel_desc(a, k[0], k[1], k[2])
        else:
            kernel_desc(a, k[0], k[1], k[2], agpr=k[3])
    open(out, "w").write(a.text())

main(sys.argv[1] if len(sys.argv) > 1 else "sequential_preLN__spectral_gfnet__geglu_ffn__prompt.s")
```

```python
import math
import struct


def f32hex(x):
    return "0x%08x" % struct.unpack("<I", struct.pack("<f", x))[0]


class Asm:
    def __init__(self):
        self.lines = []
        self.lab = 0

    def __call__(self, s):
        self.lines.append("    " + s)

    def raw(self, s):
        self.lines.append(s)

    def label(self, name):
        self.lines.append(name + ":")

    def newlabel(self, base):
        self.lab += 1
        return "L_%s_%d" % (base, self.lab)

    def comment(self, s):
        self.lines.append("    ; " + s)

    def text(self):
        return "\n".join(self.lines) + "\n"

    @staticmethod
    def P(n):
        return "v[%d:%d]" % (n, n + 1)

    def cadd(self, d, a, b):
        self("v_pk_add_f32 %s, %s, %s" % (self.P(d), self.P(a), self.P(b)))

    def csub(self, d, a, b):
        self("v_pk_add_f32 %s, %s, %s neg_lo:[0,1] neg_hi:[0,1]" % (self.P(d), self.P(a), self.P(b)))

    def caddi(self, d, a, b):
        self("v_pk_add_f32 %s, %s, %s op_sel:[0,1] op_sel_hi:[1,0] neg_lo:[0,1]" % (self.P(d), self.P(a), self.P(b)))

    def csubi(self, d, a, b):
        self("v_pk_add_f32 %s, %s, %s op_sel:[0,1] op_sel_hi:[1,0] neg_hi:[0,1]" % (self.P(d), self.P(a), self.P(b)))

    def caddrot(self, d, a, b, sign):
        if sign > 0:
            self.caddi(d, a, b)
        else:
            self.csubi(d, a, b)

    def cmul(self, d, a, w, t, conj=False):
        self("v_pk_mul_f32 %s, %s, %s op_sel:[0,0] op_sel_hi:[1,0]" % (self.P(t), self.P(a), self.P(w)))
        if not conj:
            self("v_pk_fma_f32 %s, %s, %s, %s op_sel:[1,1,0] op_sel_hi:[0,1,1] neg_lo:[0,1,0]"
                 % (self.P(d), self.P(a), self.P(w), self.P(t)))
        else:
            self("v_pk_fma_f32 %s, %s, %s, %s op_sel:[1,1,0] op_sel_hi:[0,1,1] neg_hi:[0,1,0]"
                 % (self.P(d), self.P(a), self.P(w), self.P(t)))

    def cmul_acc(self, d, a, w, c, t):
        self("v_pk_fma_f32 %s, %s, %s, %s op_sel:[0,0,0] op_sel_hi:[1,0,1]" % (self.P(t), self.P(a), self.P(w), self.P(c)))
        self("v_pk_fma_f32 %s, %s, %s, %s op_sel:[1,1,0] op_sel_hi:[0,1,1] neg_lo:[0,1,0]"
             % (self.P(d), self.P(a), self.P(w), self.P(t)))

    def cfma_real(self, d, b, sr, c, neg=False):
        n = " neg_lo:[1,0,0] neg_hi:[1,0,0]" if neg else ""
        self("v_pk_fma_f32 %s, %s, s[%d:%d], %s op_sel_hi:[1,0,1]%s" % (self.P(d), self.P(b), sr, sr + 1, self.P(c), n))

    def cmul_real(self, d, b, sr):
        self("v_pk_mul_f32 %s, %s, s[%d:%d] op_sel_hi:[1,0]" % (self.P(d), self.P(b), sr, sr + 1))

    def cfma_rot(self, d, b, sr, c, sign):
        if sign < 0:
            self("v_pk_fma_f32 %s, %s, s[%d:%d], %s op_sel:[1,0,0] op_sel_hi:[0,0,1] neg_hi:[1,0,0]"
                 % (self.P(d), self.P(b), sr, sr + 1, self.P(c)))
        else:
            self("v_pk_fma_f32 %s, %s, s[%d:%d], %s op_sel:[1,0,0] op_sel_hi:[0,0,1] neg_lo:[1,0,0]"
                 % (self.P(d), self.P(b), sr, sr + 1, self.P(c)))

    def bfly(self, a, b, pool):
        t = pool.pop()
        self.csub(t, a, b)
        self.cadd(a, a, b)
        pool.append(b)
        return a, t

    def radix4(self, x, pool, sign):
        b0, b2 = self.bfly(x[0], x[2], pool)
        b1, b3 = self.bfly(x[1], x[3], pool)
        y0, y2 = self.bfly(b0, b1, pool)
        t = pool.pop()
        self.caddrot(t, b2, b3, -sign)
        self.caddrot(b2, b2, b3, sign)
        pool.append(b3)
        return [y0, b2, y2, t]

    def radix8(self, x, pool, sign, s_rsqrt2):
        a0, a4 = self.bfly(x[0], x[4], pool)
        a1, a5 = self.bfly(x[1], x[5], pool)
        a2, a6 = self.bfly(x[2], x[6], pool)
        a3, a7 = self.bfly(x[3], x[7], pool)
        ev = self.radix4([a0, a1, a2, a3], pool, sign)
        self.caddrot(a5, a5, a5, sign)
        self.caddrot(a7, a7, a7, -sign)
        c2 = pool.pop()
        self.caddrot(c2, a4, a6, -sign)
        self.caddrot(a4, a4, a6, sign)
        pool.append(a6)
        c0 = a4
        c3u, c1u = self.bfly(a5, a7, pool)
        x5 = pool.pop()
        self.cfma_real(x5, c1u, s_rsqrt2, c0, neg=True)
        self.cfma_real(c0, c1u, s_rsqrt2, c0)
        pool.append(c1u)
        x1 = c0
        x7 = pool.pop()
        self.cfma_rot(x7, c3u, s_rsqrt2, c2, -sign)
        self.cfma_rot(c2, c3u, s_rsqrt2, c2, sign)
        pool.append(c3u)
        x3 = c2
        return [ev[0], x1, ev[1], x3, ev[2], x5, ev[3], x7]

    def radix5(self, x, pool, sign, sc1, sc2, ss1, ss2):
        t1, t3 = self.bfly(x[1], x[4], pool)
        t2, t4 = self.bfly(x[2], x[3], pool)
        m1 = pool.pop()
        m2 = pool.pop()
        self.cfma_real(m1, t1, sc1, x[0])
        self.cfma_real(m2, t1, sc2, x[0])
        self.cfma_real(m1, t2, sc2, m1)
        self.cfma_real(m2, t2, sc1, m2)
        self.cadd(x[0], x[0], t1)
        self.cadd(x[0], x[0], t2)
        n1, n2 = t1, t2
        self.cmul_real(n1, t3, ss1)
        self.cmul_real(n2, t3, ss2)
        self.cfma_real(n1, t4, ss2, n1)
        self.cfma_real(n2, t4, ss1, n2, neg=True)
        self.caddrot(t3, m1, n1, -sign)
        self.caddrot(m1, m1, n1, sign)
        self.caddrot(t4, m2, n2, -sign)
        self.caddrot(m2, m2, n2, sign)
        pool.append(n1)
        pool.append(n2)
        return [x[0], m1, m2, t4, t3]

    def twiddle_powers(self, w, n, t):
        for k in range(2, n + 1):
            a = k // 2
            b = k - a
            self.cmul(w[k], w[a], w[b], t)

    def sincos_pair(self, d, vang):
        self("v_cos_f32 v%d, v%d" % (d, vang))
        self("v_sin_f32 v%d, v%d" % (d + 1, vang))

    def wave_sum(self, v, sdst):
        m = " row_mask:0xf bank_mask:0xf"
        self("s_nop 1")
        self("v_add_f32_dpp v%d, v%d, v%d quad_perm:[1,0,3,2]%s" % (v, v, v, m))
        self("s_nop 1")
        self("v_add_f32_dpp v%d, v%d, v%d quad_perm:[2,3,0,1]%s" % (v, v, v, m))
        self("s_nop 1")
        self("v_add_f32_dpp v%d, v%d, v%d row_half_mirror%s" % (v, v, v, m))
        self("s_nop 1")
        self("v_add_f32_dpp v%d, v%d, v%d row_mirror%s" % (v, v, v, m))
        self("s_nop 1")
        self("v_add_f32_dpp v%d, v%d, v%d row_bcast:15 row_mask:0xa bank_mask:0xf" % (v, v, v))
        self("s_nop 1")
        self("v_add_f32_dpp v%d, v%d, v%d row_bcast:31 row_mask:0xc bank_mask:0xf" % (v, v, v))
        self("s_nop 1")
        self("v_readlane_b32 s%d, v%d, 63" % (sdst, v))
        self("s_nop 1")

    def srd(self, sd, sbase, nbytes):
        self("s_mov_b32 s%d, s%d" % (sd, sbase))
        self("s_and_b32 s%d, s%d, 0xffff" % (sd + 1, sbase + 1))
        self("s_mov_b32 s%d, 0x%x" % (sd + 2, nbytes))
        self("s_mov_b32 s%d, 0x00020000" % (sd + 3))

    def srd_off(self, sd, sbase, off, nbytes):
        self("s_add_u32 s%d, s%d, 0x%x" % (sd, sbase, off))
        self("s_addc_u32 s%d, s%d, 0" % (sd + 1, sbase + 1))
        self("s_and_b32 s%d, s%d, 0xffff" % (sd + 1, sd + 1))
        self("s_mov_b32 s%d, 0x%x" % (sd + 2, nbytes))
        self("s_mov_b32 s%d, 0x00020000" % (sd + 3))

    stamps_on = False
    def stamp_init(self):
        self.nst = 0
    def rt_start(self):
        if not self.stamps_on: return
        self("s_memrealtime s[98:99]")
    def rt_flush(self, kidx):
        if not self.stamps_on: return
        self("s_waitcnt vmcnt(0) lgkmcnt(0)")
        self("s_memrealtime s[94:95]")
        self("s_waitcnt lgkmcnt(0)")
        self("s_mov_b64 exec, 1")
        self("s_lshl_b32 s96, s2, 4")
        self("s_add_u32 s96, s96, s3")
        self("s_lshl_b32 s96, s96, 4")
        self("s_add_u32 s96, s96, 0x%x" % (0xC000000 + kidx * 0x400000))
        self("s_mov_b32 s88, s6")
        self("s_and_b32 s89, s7, 0xffff")
        self("s_mov_b32 s90, 0x10000000")
        self("s_mov_b32 s91, 0x00020000")
        self("v_mov_b32 v0, 0")
        self("v_mov_b32 v4, s98")
        self("v_mov_b32 v5, s99")
        self("v_mov_b32 v6, s94")
        self("v_mov_b32 v7, s95")
        self("buffer_store_dwordx4 v[4:7], v0, s[88:91], s96 offen")
    def stamp(self):
        if not self.stamps_on: return
        self("s_waitcnt lgkmcnt(0)")
        self("s_memtime s[%d:%d]" % (64 + 2 * self.nst, 65 + 2 * self.nst))
        self("s_waitcnt lgkmcnt(0)")
        self.nst += 1
    def stamp_flush(self, kidx, wave_sgpr):
        if not self.stamps_on: return
        self("s_memrealtime s[%d:%d]" % (64 + 2 * self.nst, 65 + 2 * self.nst))
        self("s_waitcnt lgkmcnt(0)")
        self.nst += 1
        self("s_mov_b64 exec, 1")
        self("s_lshl_b32 s96, s2, 4")
        self("s_add_u32 s96, s96, s%d" % wave_sgpr)
        self("s_lshl_b32 s96, s96, 7")
        self("s_add_u32 s96, s96, 0x%x" % (0x8000000 + kidx * 0x100000))
        self("s_mov_b32 s88, s6")
        self("s_and_b32 s89, s7, 0xffff")
        self("s_mov_b32 s90, 0x10000000")
        self("s_mov_b32 s91, 0x00020000")
        self("v_mov_b32 v0, 0")
        for i in range(self.nst):
            self("v_mov_b32 v2, s%d" % (64 + 2 * i))
            self("v_mov_b32 v3, s%d" % (65 + 2 * i))
            self("buffer_store_dwordx2 v[2:3], v0, s[88:91], s96 offen offset:%d" % (8 * i))
            self("s_nop 1")
        self.rt_flush(kidx)

    def sconst_pair(self, s, val):
        self("s_mov_b32 s%d, %s" % (s, f32hex(val)))
        self("s_mov_b32 s%d, %s" % (s + 1, f32hex(val)))


def kernel_header(a, name):
    a.raw(".globl %s" % name)
    a.raw(".p2align 8")
    a.raw(".type %s,@function" % name)
    a.raw("%s:" % name)
    a.rt_start()


def kernel_desc(a, name, vgpr, sgpr, accum=None, agpr=0):
    if accum is None:
        accum = (vgpr + 3) // 4 * 4
    nfv = max(vgpr, accum + agpr) if agpr else vgpr
    a.raw(".p2align 6")
    a.raw(".amdhsa_kernel %s" % name)
    a.raw("  .amdhsa_next_free_vgpr %d" % nfv)
    a.raw("  .amdhsa_next_free_sgpr %d" % sgpr)
    a.raw("  .amdhsa_accum_offset %d" % accum)
    a.raw("  .amdhsa_group_segment_fixed_size 0")
    a.raw("  .amdhsa_kernarg_size 80")
    a.raw("  .amdhsa_user_sgpr_count 2")
    a.raw("  .amdhsa_user_sgpr_kernarg_segment_ptr 1")
    a.raw("  .amdhsa_system_sgpr_workgroup_id_x 1")
    a.raw(".end_amdhsa_kernel")
```

```python
import math
from asmlib import *

WS_ZT = 0x0000000
WS_YT = 0x0600000
WS_WT = 0x0C00000
WS_H = 0x1000000
WS_LN2F = 0x1400000
WS_WGU = 0x1800000
WS_WDF = 0x1C00000
WS_ACTF = 0x2000000
ZT_BYTES = 321 * 2048 * 8
WT_BYTES = 321 * 2048 * 4
X_BYTES = 2048 * 640 * 2
WF_BYTES = 2048 * 321 * 2

WSCR = 2880
TBASE = 8 * WSCR
K13_LDS = TBASE + 384 * 80

K1_NWT = 96


def emit_layernorm(a, X, vt, s_tmp, s_inv640):
    t0 = vt
    a.cadd(t0, X[0], X[1])
    a.cadd(t0 + 2, X[2], X[3])
    a.cadd(t0, t0, X[4])
    a.cadd(t0, t0, t0 + 2)
    a("v_add_f32 v%d, v%d, v%d" % (t0, t0, t0 + 1))
    a.wave_sum(t0, s_tmp)
    a("v_mov_b32 v%d, s%d" % (t0 + 6, s_inv640))
    a("v_mul_f32 v%d, s%d, v%d" % (t0 + 6, s_tmp, t0 + 6))
    a("v_mov_b32 v%d, v%d" % (t0 + 7, t0 + 6))
    for j in range(5):
        a.csub(t0 + 2, X[j], t0 + 6)
        if j == 0:
            a("v_pk_mul_f32 %s, %s, %s" % (a.P(t0), a.P(t0 + 2), a.P(t0 + 2)))
        else:
            a("v_pk_fma_f32 %s, %s, %s, %s" % (a.P(t0), a.P(t0 + 2), a.P(t0 + 2), a.P(t0)))
    a("v_add_f32 v%d, v%d, v%d" % (t0, t0, t0 + 1))
    a.wave_sum(t0, s_tmp)
    a("v_mov_b32 v%d, s%d" % (t0 + 4, s_inv640))
    a("v_mul_f32 v%d, s%d, v%d" % (t0 + 4, s_tmp, t0 + 4))
    a("v_cvt_pk_bf16_f32 v%d, v%d, v%d" % (t0 + 4, t0 + 4, t0 + 6))
    a("v_and_b32 v%d, 0xffff0000, v%d" % (t0 + 6, t0 + 4))
    a("v_mov_b32 v%d, v%d" % (t0 + 7, t0 + 6))
    a("v_lshlrev_b32 v%d, 16, v%d" % (t0 + 4, t0 + 4))
    a("v_add_f32 v%d, %s, v%d" % (t0 + 4, f32hex(1e-5), t0 + 4))
    a("v_cvt_pk_bf16_f32 v%d, v%d, v%d" % (t0 + 4, t0 + 4, t0 + 4))
    a("v_lshlrev_b32 v%d, 16, v%d" % (t0 + 4, t0 + 4))
    a("v_sqrt_f32 v%d, v%d" % (t0 + 4, t0 + 4))
    a("s_nop 0")
    a("v_cvt_pk_bf16_f32 v%d, v%d, v%d" % (t0 + 4, t0 + 4, t0 + 4))
    a("v_lshlrev_b32 v%d, 16, v%d" % (t0 + 4, t0 + 4))
    a("v_rcp_f32 v%d, v%d" % (t0 + 5, t0 + 4))
    a("s_nop 0")
    a("v_fma_f32 v%d, -v%d, v%d, 2.0" % (t0 + 4, t0 + 4, t0 + 5))
    a("v_mul_f32 v%d, v%d, v%d" % (t0 + 4, t0 + 4, t0 + 5))
    a("v_mov_b32 v%d, v%d" % (t0 + 5, t0 + 4))
    for j in range(5):
        x = X[j]
        a.csub(x, x, t0 + 6)
        a("v_cvt_pk_bf16_f32 v%d, v%d, v%d" % (x + 1, x, x + 1))
        a("v_lshlrev_b32 v%d, 16, v%d" % (x, x + 1))
        a("v_and_b32 v%d, 0xffff0000, v%d" % (x + 1, x + 1))
        a("v_pk_mul_f32 %s, %s, %s" % (a.P(x), a.P(x), a.P(t0 + 4)))
        a("v_cvt_pk_bf16_f32 v%d, v%d, v%d" % (t0 + 8 + j, x, x + 1))
        a("v_lshlrev_b32 v%d, 16, v%d" % (x, t0 + 8 + j))
        a("v_and_b32 v%d, 0xffff0000, v%d" % (x + 1, t0 + 8 + j))
    return [t0 + 8 + j for j in range(5)]


def fft_consts(a, s0):
    c = {}
    names = [("r2", 1 / math.sqrt(2)), ("c1", math.cos(2 * math.pi / 5)), ("c2", math.cos(4 * math.pi / 5)),
             ("s1", math.sin(2 * math.pi / 5)), ("s2", math.sin(4 * math.pi / 5))]
    for i, (n, v) in enumerate(names):
        c[n] = s0 + 2 * i
        a.sconst_pair(s0 + 2 * i, v)
    return c


def gen_k1(a):
    name = "k1_kernel"
    kernel_header(a, name)
    L_wt = a.newlabel("k1wt")
    L_end = a.newlabel("k1end")
    a("s_load_dwordx2 s[4:5], s[0:1], 0")
    a("s_load_dwordx4 s[8:11], s[0:1], 8")
    a("s_load_dwordx2 s[6:7], s[0:1], 72")
    a("v_and_b32 v1, 63, v0")
    a("v_lshrrev_b32 v2, 6, v0")
    a("s_nop 0")
    a("v_readfirstlane_b32 s3, v2")
    a("s_cmp_ge_u32 s2, 256")
    a("s_cbranch_scc1 %s" % L_wt)
    C = fft_consts(a, 40)
    a("s_mov_b32 s50, %s" % f32hex(1.0 / 640))
    a("s_lshl_b32 s12, s2, 3")
    a("s_add_u32 s12, s12, s3")
    a("s_mul_i32 s13, s12, 1280")
    a("v_lshlrev_b32 v3, 2, v1")
    a("s_waitcnt lgkmcnt(0)")
    a.srd(16, 4, X_BYTES)
    a.srd_off(20, 6, WS_ZT, ZT_BYTES)
    a.stamp_init()
    a.stamp()
    for j in range(5):
        a("buffer_load_dword v%d, v3, s[16:19], s13 offen offset:%d" % (5 + j, j * 256))
    W1 = [None, 40, 42, 44, 46]
    a("v_cvt_f32_u32 v4, v1")
    a("v_mul_f32 v10, %s, v4" % f32hex(-1.0 / 320))
    a.sincos_pair(40, 10)
    a("s_nop 0")
    a.twiddle_powers(W1, 4, 12)
    W2 = [None] + [48 + 2 * i for i in range(7)]
    a("v_and_b32 v10, 7, v1")
    a("v_cvt_f32_u32 v10, v10")
    a("v_mul_f32 v10, %s, v10" % f32hex(-1.0 / 64))
    a.sincos_pair(48, 10)
    a("s_nop 0")
    a.twiddle_powers(W2, 7, 12)
    W3 = [62 + 2 * j for j in range(5)]
    for j in range(5):
        a("v_mov_b32 v10, %s" % f32hex(64.0 * j / 640 + 0.5))
        a("v_fmac_f32 v10, %s, v4" % f32hex(1.0 / 640))
        a("v_sin_f32 v%d, v10" % W3[j])
        a("v_cos_f32 v%d, v10" % (W3[j] + 1))
    a("s_mul_i32 s14, s3, %d" % WSCR)
    a("v_lshlrev_b32 v72, 3, v1")
    a("v_add_u32 v72, s14, v72")
    a("v_lshrrev_b32 v73, 3, v1")
    a("v_mul_u32_u24 v74, 576, v73")
    a("v_and_b32 v75, 7, v1")
    a("v_lshlrev_b32 v76, 3, v75")
    a("v_add3_u32 v76, v74, v76, s14")
    a("v_mul_u32_u24 v77, 72, v75")
    a("v_add3_u32 v77, v74, v77, s14")
    a("v_mul_u32_u24 v78, 5, v75")
    a("v_add_u32 v78, v78, v73")
    a("v_lshlrev_b32 v78, 3, v78")
    a("v_add_u32 v78, s14, v78")
    a("v_sub_u32 v79, 320, v1")
    a("v_lshlrev_b32 v79, 3, v79")
    a("v_add_u32 v79, s14, v79")
    a("v_mul_u32_u24 v80, 80, v1")
    a("s_lshl_b32 s15, s3, 3")
    a("s_add_u32 s15, s15, %d" % TBASE)
    a("v_add_u32 v80, s15, v80")
    X = [14, 16, 18, 20, 22]
    a.stamp()
    a("s_waitcnt vmcnt(0)")
    a.stamp()
    for j in range(5):
        a("v_lshlrev_b32 v%d, 16, v%d" % (X[j], 5 + j))
        a("v_and_b32 v%d, 0xffff0000, v%d" % (X[j] + 1, 5 + j))
    emit_layernorm(a, X, 24, 38, 50)
    a.stamp()
    pool = [24, 26, 28, 30, 32, 34, 36, 38]
    A = a.radix5(X, pool, -1, C["c1"], C["c2"], C["s1"], C["s2"])
    t = pool.pop()
    for k1 in range(1, 5):
        a.cmul(A[k1], A[k1], W1[k1], t)
    pool.append(t)
    for k1 in range(5):
        a("ds_write_b64 v72, %s offset:%d" % (a.P(A[k1]), k1 * 576))
    pool += A
    a("s_waitcnt lgkmcnt(0)")
    B = [pool.pop() for _ in range(8)]
    for m1 in range(8):
        a("ds_read_b64 %s, v76 offset:%d" % (a.P(B[m1]), m1 * 64))
    a("s_waitcnt lgkmcnt(0)")
    B = a.radix8(B, pool, -1, C["r2"])
    t = pool.pop()
    for q1 in range(1, 8):
        a.cmul(B[q1], B[q1], W2[q1], t)
    pool.append(t)
    a("v_cmp_gt_u32 vcc, 40, v1")
    a("s_and_saveexec_b64 s[32:33], vcc")
    for q1 in range(8):
        a("ds_write_b64 v76, %s offset:%d" % (a.P(B[q1]), q1 * 72))
    a("s_mov_b64 exec, s[32:33]")
    pool += B
    a("s_waitcnt lgkmcnt(0)")
    B = [pool.pop() for _ in range(8)]
    for m2 in range(8):
        a("ds_read_b64 %s, v77 offset:%d" % (a.P(B[m2]), m2 * 8))
    a("s_waitcnt lgkmcnt(0)")
    B = a.radix8(B, pool, -1, C["r2"])
    a("s_mov_b64 exec, vcc")
    for q2 in range(8):
        a("ds_write_b64 v78, %s offset:%d" % (a.P(B[q2]), q2 * 320))
    a("s_mov_b64 exec, 1")
    a("ds_write_b64 v78, %s offset:%d" % (a.P(B[0]), 320 * 8))
    a("s_mov_b64 exec, s[32:33]")
    pool += B
    a("s_waitcnt lgkmcnt(0)")
    Zk = [pool.pop() for _ in range(5)]
    Zm = [pool.pop() for _ in range(5)]
    a("v_subrev_u32 v81, 2048, v79")
    for j in range(5):
        a("ds_read_b64 %s, v72 offset:%d" % (a.P(Zk[j]), j * 512))
        a("ds_read_b64 %s, v81 offset:%d" % (a.P(Zm[j]), 2048 - j * 512))
    a("s_waitcnt lgkmcnt(0)")
    S = pool.pop()
    t = pool.pop()
    for j in range(5):
        zk, zm = Zk[j], Zm[j]
        a("v_pk_add_f32 %s, %s, %s neg_hi:[0,1]" % (a.P(S), a.P(zk), a.P(zm)))
        a("v_pk_add_f32 %s, %s, %s neg_lo:[0,1]" % (a.P(zk), a.P(zk), a.P(zm)))
        if j == 0:
            a("v_sub_f32 v%d, v%d, v%d" % (zm, S, zk + 1))
            a("v_mov_b32 v%d, 0" % (zm + 1))
        a.cmul_acc(zk, zk, W3[j], S, t)
        a("ds_write_b64 v80, %s offset:%d" % (a.P(zk), j * 64 * 80))
        if j == 0:
            a("s_mov_b64 exec, 1")
            a("ds_write_b64 v80, %s offset:%d" % (a.P(zm), 320 * 80))
            a("s_mov_b64 exec, s[32:33]")
    a("s_waitcnt lgkmcnt(0)")
    a.stamp()
    a("s_barrier")
    a.stamp()
    a("v_lshrrev_b32 v4, 2, v0")
    a("v_and_b32 v5, 3, v0")
    a("v_mul_u32_u24 v6, 80, v4")
    a("v_lshlrev_b32 v5, 4, v5")
    a("v_add3_u32 v6, v6, v5, %d" % 0)
    a("v_add_u32 v6, %d, v6" % TBASE)
    a("v_lshlrev_b32 v7, 14, v4")
    a("v_add_u32 v7, v7, v5")
    a("s_lshl_b32 s13, s2, 6")
    for r in range(3):
        a("ds_read_b128 v[%d:%d], v6 offset:%d" % (8 + 4 * r, 11 + 4 * r, r * 128 * 80))
    a("s_add_u32 s24, s13, %d" % (128 * 16384))
    a("s_add_u32 s25, s13, %d" % (256 * 16384))
    a("s_waitcnt lgkmcnt(2)")
    a("buffer_store_dwordx4 v[8:11], v7, s[20:23], s13 offen")
    a("s_waitcnt lgkmcnt(1)")
    a("buffer_store_dwordx4 v[12:15], v7, s[20:23], s24 offen")
    a("s_waitcnt lgkmcnt(0)")
    a("v_cmp_gt_u32 vcc, %d, v0" % (1284 - 1024))
    a("s_and_saveexec_b64 s[32:33], vcc")
    a("buffer_store_dwordx4 v[16:19], v7, s[20:23], s25 offen")
    a.stamp()
    a.stamp_flush(1, 3)
    a("s_endpgm")
    a.label(L_wt)
    a("s_cmp_ge_u32 s2, %d" % (256 + K1_NWT))
    a("s_cbranch_scc1 %s" % L_end)
    a("s_sub_u32 s12, s2, 256")
    a("s_lshl_b32 s12, s12, 3")
    a("s_add_u32 s12, s12, s3")
    a("s_mul_i32 s13, s12, 43691")
    a("s_lshr_b32 s13, s13, 18")
    a("s_mul_i32 s14, s13, 6")
    a("s_sub_u32 s14, s12, s14")
    a("s_lshl_b32 s14, s14, 6")
    a("v_add_u32 v3, s14, v1")
    a("s_waitcnt lgkmcnt(0)")
    a.srd(16, 8, WF_BYTES)
    a.srd(20, 10, WF_BYTES)
    a.srd_off(24, 6, WS_WT, WT_BYTES)
    a("v_cmp_gt_u32 vcc, 321, v3")
    a("s_and_saveexec_b64 s[32:33], vcc")
    a("s_cbranch_execz %s" % L_end)
    a("v_lshlrev_b32 v4, 1, v3")
    a("v_lshlrev_b32 v5, 13, v3")
    a("s_lshl_b32 s28, s13, 2")
    a("s_and_b32 s29, s28, 7")
    a("s_lshl_b32 s29, s29, 6")
    a("s_lshr_b32 s30, s28, 3")
    a("s_and_b32 s30, s30, 7")
    a("s_lshl_b32 s30, s30, 3")
    a("s_lshr_b32 s31, s28, 6")
    a("s_add_u32 s29, s29, s30")
    a("s_add_u32 s29, s29, s31")
    a("s_mul_i32 s29, s29, 642")
    for i in range(4):
        for tt in range(4):
            k = 64 * i + 512 * tt
            a("s_add_u32 s34, s29, %d" % (k * 642))
            a("buffer_load_ushort v%d, v4, s[16:19], s34 offen" % (8 + 4 * i + tt))
            a("buffer_load_ushort v%d, v4, s[20:23], s34 offen" % (24 + 4 * i + tt))
    a("s_lshl_b32 s28, s28, 4")
    a("s_waitcnt vmcnt(0)")
    for i in range(16):
        a("v_lshl_or_b32 v%d, v%d, 16, v%d" % (8 + i, 24 + i, 8 + i))
    for i in range(4):
        a("buffer_store_dwordx4 v[%d:%d], v5, s[24:27], s28 offen offset:%d" % (8 + 4 * i, 11 + 4 * i, 16 * i))
    a.rt_flush(1)
    a.label(L_end)
    a("s_endpgm")
    return name, 84, 100


K2_PAD = 36
K2_BUF = 8 * 8 * K2_PAD * 8
K2_LDS = 2 * K2_BUF


def gen_k2(a, extra_path=None, n_extra=0):
    name = "k2_kernel"
    kernel_header(a, name)
    L_x = a.newlabel("k2x")
    L_end = a.newlabel("k2end")
    a("s_load_dwordx2 s[6:7], s[0:1], 72")
    a("s_cmp_ge_u32 s2, 321")
    a("s_cbranch_scc1 %s" % L_x)
    C = fft_consts(a, 40)
    a("s_lshl_b32 s12, s2, 14")
    a("s_lshl_b32 s13, s2, 13")
    a("v_lshlrev_b32 v1, 3, v0")
    a("v_lshlrev_b32 v2, 5, v0")
    a("s_waitcnt lgkmcnt(0)")
    a.srd_off(16, 6, WS_ZT, ZT_BYTES)
    a.srd_off(20, 6, WS_YT, ZT_BYTES)
    a.srd_off(24, 6, WS_WT, WT_BYTES)
    a.stamp_init()
    a.stamp()
    X = [4 + 2 * i for i in range(8)]
    for n1 in range(8):
        a("buffer_load_dwordx2 %s, v1, s[16:19], s12 offen offset:%d" % (a.P(X[n1]), (n1 * 2048) % 4096) if n1 < 2 else
          "buffer_load_dwordx2 %s, v1, s[16:19], s%d offen" % (a.P(X[n1]), 28 + n1))
        if n1 == 1:
            for m in range(2, 8):
                a("s_add_u32 s%d, s12, %d" % (28 + m, m * 2048))
    a("buffer_load_dwordx4 v[92:95], v2, s[24:27], s13 offen")
    a("buffer_load_dwordx4 v[96:99], v2, s[24:27], s13 offen offset:16")
    W1 = [None] + [40 + 2 * i for i in range(7)]
    W2 = [None] + [54 + 2 * i for i in range(7)]
    W3 = [None] + [68 + 2 * i for i in range(7)]
    a("v_cvt_f32_u32 v20, v0")
    a("v_mul_f32 v20, %s, v20" % f32hex(-1.0 / 2048))
    a.sincos_pair(40, 20)
    a("v_and_b32 v21, 31, v0")
    a("v_cvt_f32_u32 v20, v21")
    a("v_mul_f32 v20, %s, v20" % f32hex(-1.0 / 256))
    a.sincos_pair(54, 20)
    a("v_and_b32 v22, 3, v0")
    a("v_cvt_f32_u32 v20, v22")
    a("v_mul_f32 v20, %s, v20" % f32hex(-1.0 / 32))
    a.sincos_pair(68, 20)
    a("s_nop 0")
    a.twiddle_powers(W1, 7, 24)
    a.twiddle_powers(W2, 7, 24)
    a.twiddle_powers(W3, 7, 24)
    a("v_lshrrev_b32 v23, 5, v0")
    a("v_mul_u32_u24 v82, 36, v23")
    a("v_add_u32 v82, v82, v21")
    a("v_lshlrev_b32 v82, 3, v82")
    a("v_mul_u32_u24 v83, 288, v23")
    a("v_add_u32 v84, v83, v22")
    a("v_add_u32 v83, v83, v21")
    a("v_lshlrev_b32 v83, 3, v83")
    a("v_bfe_u32 v24, v0, 2, 3")
    a("v_mul_u32_u24 v24, 36, v24")
    a("v_add_u32 v84, v84, v24")
    a("v_mul_u32_u24 v85, 7, v22")
    a("v_add_u32 v85, v85, v84")
    a("v_lshlrev_b32 v84, 3, v84")
    a("v_lshlrev_b32 v85, 3, v85")
    pool = [20, 22, 24, 26, 28, 30, 32, 34, 36, 38]
    buf = [0]

    def exch(regs, waddr, wstride, raddr, rstride):
        b = buf[0] * K2_BUF
        buf[0] ^= 1
        for i, r in enumerate(regs):
            a("ds_write_b64 v%d, %s offset:%d" % (waddr, a.P(r), b + i * wstride))
        a("s_waitcnt lgkmcnt(0)")
        a("s_barrier")
        for i, r in enumerate(regs):
            a("ds_read_b64 %s, v%d offset:%d" % (a.P(r), raddr, b + i * rstride))
        a("s_waitcnt lgkmcnt(0)")

    def twid(regs, W, conj):
        t = pool.pop()
        for i in range(1, 8):
            a.cmul(regs[i], regs[i], W[i], t, conj=conj)
        pool.append(t)

    a.stamp()
    a("s_waitcnt vmcnt(2)")
    a.stamp()
    R = a.radix8(X, pool, -1, C["r2"])
    twid(R, W1, False)
    exch(R, 82, 2304, 83, 288)
    R = a.radix8(R, pool, -1, C["r2"])
    twid(R, W2, False)
    exch(R, 83, 288, 84, 32)
    R = a.radix8(R, pool, -1, C["r2"])
    twid(R, W3, False)
    exch(R, 84, 32, 85, 8)
    Ra = a.radix4(R[0:4], pool, -1)
    Rb = a.radix4(R[4:8], pool, -1)
    R = Ra + Rb
    a.stamp()
    a("s_waitcnt vmcnt(0)")
    a.stamp()
    t = pool.pop()
    w = pool.pop()
    for i in range(8):
        a("v_lshlrev_b32 v%d, 16, v%d" % (w, 92 + i))
        a("v_and_b32 v%d, 0xffff0000, v%d" % (w + 1, 92 + i))
        a.cmul(R[i], R[i], w, t)
    pool.append(t)
    pool.append(w)
    Ra = a.radix4(R[0:4], pool, +1)
    Rb = a.radix4(R[4:8], pool, +1)
    R = Ra + Rb
    exch(R, 85, 8, 84, 32)
    twid(R, W3, True)
    R = a.radix8(R, pool, +1, C["r2"])
    exch(R, 84, 32, 83, 288)
    twid(R, W2, True)
    R = a.radix8(R, pool, +1, C["r2"])
    exch(R, 83, 288, 82, 2304)
    twid(R, W1, True)
    R = a.radix8(R, pool, +1, C["r2"])
    a("v_lshrrev_b32 v86, 3, v0")
    a("v_mul_u32_u24 v86, 20544, v86")
    a("v_and_b32 v87, 7, v0")
    a("v_lshl_add_u32 v86, v87, 3, v86")
    a("s_lshl_b32 s12, s2, 6")
    for n1 in range(8):
        a("s_add_u32 s13, s12, %d" % (n1 * 32 * 20544))
        a("buffer_store_dwordx2 %s, v86, s[20:23], s13 offen" % a.P(R[n1]))
    a.stamp()
    if a.stamps_on:
        a("v_lshrrev_b32 v2, 6, v0")
        a("s_nop 0")
        a("v_readfirstlane_b32 s3, v2")
    a.stamp_flush(2, 3)
    a("s_endpgm")
    a.label(L_x)
    if extra_path is not None:
        extra_path(a, L_end)
    a.label(L_end)
    a("s_endpgm")
    return name, 100, 100


def gen_k3(a):
    name = "k3_kernel"
    kernel_header(a, name)
    L_end = a.newlabel("k3end")
    a("s_cmp_ge_u32 s2, 256")
    a("s_cbranch_scc1 %s" % L_end)
    a("s_load_dwordx2 s[4:5], s[0:1], 0")
    a("s_load_dwordx2 s[6:7], s[0:1], 72")
    a("v_and_b32 v1, 63, v0")
    a("v_lshrrev_b32 v2, 6, v0")
    a("s_nop 0")
    a("v_readfirstlane_b32 s3, v2")
    C = fft_consts(a, 40)
    a("s_mov_b32 s50, %s" % f32hex(1.0 / 640))
    a.sconst_pair(52, 1.0 / (640.0 * 2048.0 * 2.0))
    a("s_lshl_b32 s12, s2, 3")
    a("s_add_u32 s12, s12, s3")
    a("s_mul_i32 s13, s12, 1280")
    a("v_lshlrev_b32 v3, 2, v1")
    a("v_lshrrev_b32 v4, 2, v0")
    a("v_and_b32 v5, 3, v0")
    a("v_mul_u32_u24 v6, 80, v4")
    a("v_lshlrev_b32 v5, 4, v5")
    a("v_add_u32 v6, v6, v5")
    a("v_add_u32 v6, %d, v6" % TBASE)
    a("v_lshlrev_b32 v7, 4, v0")
    a("s_mul_i32 s34, s2, 20544")
    a("s_add_u32 s35, s34, 8192")
    a("s_add_u32 s36, s34, 16384")
    a("s_waitcnt lgkmcnt(0)")
    a.srd(16, 4, X_BYTES)
    a.srd_off(20, 6, WS_YT, ZT_BYTES)
    a.srd_off(24, 6, WS_H, X_BYTES)
    a.srd_off(28, 6, WS_LN2F, X_BYTES)
    a.stamp_init()
    a.stamp()
    a("buffer_load_dwordx4 v[8:11], v7, s[20:23], s34 offen")
    a("buffer_load_dwordx4 v[12:15], v7, s[20:23], s35 offen")
    a("buffer_load_dwordx4 v[16:19], v7, s[20:23], s36 offen")
    for j in range(5):
        a("buffer_load_dword v%d, v3, s[16:19], s13 offen offset:%d" % (84 + j, j * 256))
    W1 = [None, 40, 42, 44, 46]
    a("v_cvt_f32_u32 v20, v1")
    a("v_mul_f32 v21, %s, v20" % f32hex(-1.0 / 320))
    a.sincos_pair(40, 21)
    a("s_nop 0")
    a.twiddle_powers(W1, 4, 22)
    W2 = [None] + [48 + 2 * i for i in range(7)]
    a("v_and_b32 v21, 7, v1")
    a("v_cvt_f32_u32 v21, v21")
    a("v_mul_f32 v21, %s, v21" % f32hex(-1.0 / 64))
    a.sincos_pair(48, 21)
    a("s_nop 0")
    a.twiddle_powers(W2, 7, 22)
    W3 = [62 + 2 * j for j in range(5)]
    for j in range(5):
        a("v_mov_b32 v21, %s" % f32hex(-64.0 * j / 640))
        a("v_fmac_f32 v21, %s, v20" % f32hex(-1.0 / 640))
        a("v_sin_f32 v%d, v21" % W3[j])
        a("v_cos_f32 v%d, v21" % (W3[j] + 1))
    a("s_mul_i32 s14, s3, %d" % WSCR)
    a("v_lshlrev_b32 v72, 3, v1")
    a("v_add_u32 v72, s14, v72")
    a("v_lshrrev_b32 v73, 3, v1")
    a("v_mul_u32_u24 v74, 576, v73")
    a("v_and_b32 v75, 7, v1")
    a("v_lshlrev_b32 v76, 3, v75")
    a("v_add3_u32 v76, v74, v76, s14")
    a("v_mul_u32_u24 v77, 72, v75")
    a("v_add3_u32 v77, v74, v77, s14")
    a("v_mul_u32_u24 v78, 5, v75")
    a("v_add_u32 v78, v78, v73")
    a("v_lshlrev_b32 v78, 3, v78")
    a("v_add_u32 v78, s14, v78")
    a("s_lshl_b32 s15, s3, 3")
    a("s_add_u32 s15, s15, %d" % TBASE)
    a("v_mul_u32_u24 v80, 80, v1")
    a("v_add_u32 v80, s15, v80")
    a("v_sub_u32 v81, 64, v1")
    a("v_mul_u32_u24 v81, 80, v81")
    a("v_add_u32 v81, s15, v81")
    a("v_cmp_gt_u32 vcc, %d, v0" % (1284 - 1024))
    a("s_and_saveexec_b64 s[32:33], vcc")
    a.stamp()
    a("s_waitcnt vmcnt(5)")
    a.stamp()
    a("ds_write_b128 v6, v[16:19] offset:%d" % (2 * 128 * 80))
    a("s_mov_b64 exec, s[32:33]")
    a("ds_write_b128 v6, v[8:11]")
    a("ds_write_b128 v6, v[12:15] offset:%d" % (128 * 80))
    a("s_waitcnt lgkmcnt(0)")
    a("s_barrier")
    a.stamp()
    pool = [8, 10, 12, 14, 16, 18, 20, 22, 24, 26, 28, 30, 32, 34, 36, 38]
    Yk = [pool.pop() for _ in range(5)]
    Ym = [pool.pop() for _ in range(5)]
    for j in range(5):
        a("ds_read_b64 %s, v80 offset:%d" % (a.P(Yk[j]), j * 5120))
        a("ds_read_b64 %s, v81 offset:%d" % (a.P(Ym[j]), (4 - j) * 5120))
    a("s_waitcnt lgkmcnt(0)")
    a("s_mov_b64 exec, 1")
    a("v_mov_b32 v%d, 0" % (Yk[0] + 1))
    a("v_mov_b32 v%d, 0" % (Ym[0] + 1))
    a("s_mov_b64 exec, s[32:33]")
    S = pool.pop()
    t = pool.pop()
    for j in range(5):
        yk, ym = Yk[j], Ym[j]
        a("v_pk_add_f32 %s, %s, %s neg_hi:[0,1]" % (a.P(S), a.P(yk), a.P(ym)))
        a("v_pk_add_f32 %s, %s, %s neg_lo:[0,1]" % (a.P(yk), a.P(yk), a.P(ym)))
        a.cmul_acc(yk, yk, W3[j], S, t)
        a("ds_write_b64 v72, %s offset:%d" % (a.P(yk), j * 512))
    pool += [S, t] + Yk + Ym
    a("s_waitcnt lgkmcnt(0)")
    B = [pool.pop() for _ in range(8)]
    for q2 in range(8):
        a("ds_read_b64 %s, v78 offset:%d" % (a.P(B[q2]), q2 * 320))
    a("s_waitcnt lgkmcnt(0)")
    B = a.radix8(B, pool, +1, C["r2"])
    t = pool.pop()
    for m2 in range(1, 8):
        a.cmul(B[m2], B[m2], W2[m2], t, conj=True)
    pool.append(t)
    a("v_cmp_gt_u32 vcc, 40, v1")
    a("s_and_saveexec_b64 s[32:33], vcc")
    for m2 in range(8):
        a("ds_write_b64 v77, %s offset:%d" % (a.P(B[m2]), m2 * 8))
    a("s_mov_b64 exec, s[32:33]")
    pool += B
    a("s_waitcnt lgkmcnt(0)")
    B = [pool.pop() for _ in range(8)]
    for q1 in range(8):
        a("ds_read_b64 %s, v76 offset:%d" % (a.P(B[q1]), q1 * 72))
    a("s_waitcnt lgkmcnt(0)")
    B = a.radix8(B, pool, +1, C["r2"])
    a("s_mov_b64 exec, vcc")
    for m1 in range(8):
        a("ds_write_b64 v76, %s offset:%d" % (a.P(B[m1]), m1 * 64))
    a("s_mov_b64 exec, s[32:33]")
    pool += B
    a("s_waitcnt lgkmcnt(0)")
    A = [pool.pop() for _ in range(5)]
    for k1 in range(5):
        a("ds_read_b64 %s, v72 offset:%d" % (a.P(A[k1]), k1 * 576))
    a("s_waitcnt lgkmcnt(0)")
    t = pool.pop()
    for k1 in range(1, 5):
        a.cmul(A[k1], A[k1], W1[k1], t, conj=True)
    pool.append(t)
    Z = a.radix5(A, pool, +1, C["c1"], C["c2"], C["s1"], C["s2"])
    a.stamp()
    a("s_waitcnt vmcnt(0)")
    t = pool.pop()
    for j in range(5):
        z = Z[j]
        a.cmul_real(z, z, 52)
        a("v_cvt_pk_bf16_f32 v%d, v%d, v%d" % (z + 1, z, z + 1))
        a("v_lshlrev_b32 v%d, 16, v%d" % (z, z + 1))
        a("v_and_b32 v%d, 0xffff0000, v%d" % (z + 1, z + 1))
        a("v_lshlrev_b32 v%d, 16, v%d" % (t, 84 + j))
        a("v_and_b32 v%d, 0xffff0000, v%d" % (t + 1, 84 + j))
        a.cadd(z, z, t)
        a("v_cvt_pk_bf16_f32 v%d, v%d, v%d" % (84 + j, z, z + 1))
        a("v_lshlrev_b32 v%d, 16, v%d" % (z, 84 + j))
        a("v_and_b32 v%d, 0xffff0000, v%d" % (z + 1, 84 + j))
        a("buffer_store_dword v%d, v3, s[24:27], s13 offen offset:%d" % (84 + j, j * 256))
    pk = emit_layernorm(a, Z, 40, 38, 50)
    a("v_lshrrev_b32 v60, 3, v1")
    a("v_lshlrev_b32 v60, 10, v60")
    a("v_bfe_u32 v61, v1, 2, 1")
    a("v_lshlrev_b32 v61, 9, v61")
    a("v_and_b32 v62, 3, v1")
    a("v_lshlrev_b32 v62, 2, v62")
    a("v_add3_u32 v60, v60, v61, v62")
    a("s_lshr_b32 s36, s12, 5")
    a("s_mul_i32 s36, s36, 40960")
    a("s_and_b32 s37, s12, 31")
    a("s_lshl_b32 s37, s37, 4")
    a("s_add_u32 s36, s36, s37")
    for j in range(5):
        a("s_add_u32 s37, s36, %d" % (j * 8192))
        a("buffer_store_dword v%d, v60, s[28:31], s37 offen" % pk[j])
    a.stamp()
    a.stamp_flush(3, 3)
    a.label(L_end)
    a("s_endpgm")
    return name, 92, 100
```

```python
import math
from asmlib import *
from fft_kernels import *

WS_BYTES = 0x10000000
K2_NEXTRA = 360


def relayout_path(a, L_end):
    L_wd = a.newlabel("rl_wd")
    a("s_cmp_ge_u32 s2, %d" % (321 + K2_NEXTRA))
    a("s_cbranch_scc1 %s" % L_end)
    a("s_load_dwordx4 s[8:11], s[0:1], 32")
    a("s_load_dwordx2 s[12:13], s[0:1], 48")
    a("v_and_b32 v1, 63, v0")
    a("v_lshrrev_b32 v2, 6, v0")
    a("s_nop 0")
    a("v_readfirstlane_b32 s3, v2")
    a("s_sub_u32 s14, s2, 321")
    a("s_lshl_b32 s14, s14, 2")
    a("s_add_u32 s14, s14, s3")
    a("v_and_b32 v3, 15, v1")
    a("v_lshrrev_b32 v4, 4, v1")
    a("s_waitcnt lgkmcnt(0)")
    a.srd(28, 6, WS_BYTES)
    a("s_cmp_ge_u32 s14, 960")
    a("s_cbranch_scc1 %s" % L_wd)
    L_up = a.newlabel("rl_up")
    L_go = a.newlabel("rl_go")
    a("s_cmp_ge_u32 s14, 480")
    a("s_cbranch_scc1 %s" % L_up)
    a.srd(16, 8, 640 * 1536 * 2)
    a("s_mov_b32 s15, 0")
    a("s_branch %s" % L_go)
    a.label(L_up)
    a.srd(16, 10, 640 * 1536 * 2)
    a("s_mov_b32 s15, 1")
    a("s_sub_u32 s14, s14, 480")
    a.label(L_go)
    a("s_mul_i32 s20, s14, 52429")
    a("s_lshr_b32 s20, s20, 18")
    a("s_mul_i32 s21, s20, 5")
    a("s_sub_u32 s21, s14, s21")
    a("s_lshl_b32 s21, s21, 2")
    a("v_mul_u32_u24 v5, 24576, v4")
    a("v_lshl_add_u32 v5, v3, 1, v5")
    a("s_mul_i32 s22, s21, 98304")
    a("s_lshl_b32 s23, s20, 5")
    a("s_add_u32 s22, s22, s23")
    for i in range(4):
        for j in range(8):
            a("s_add_u32 s24, s22, %d" % (i * 98304 + j * 3072))
            a("buffer_load_ushort v%d, v5, s[16:19], s24 offen" % ((24 if j & 1 else 8) + 4 * i + j // 2))
    a("v_lshrrev_b32 v6, 1, v4")
    a("v_lshlrev_b32 v6, 10, v6")
    a("v_and_b32 v7, 1, v4")
    a("v_lshlrev_b32 v7, 9, v7")
    a("v_lshl_add_u32 v6, v3, 4, v6")
    a("v_add_u32 v6, v6, v7")
    a("s_mul_i32 s22, s20, 40960")
    a("s_lshl_b32 s23, s21, 11")
    a("s_add_u32 s22, s22, s23")
    a("s_lshl_b32 s23, s15, 8")
    a("s_add_u32 s22, s22, s23")
    a("s_add_u32 s22, s22, 0x%x" % WS_WGU)
    a("s_waitcnt vmcnt(0)")
    for i in range(16):
        a("v_lshl_or_b32 v%d, v%d, 16, v%d" % (8 + i, 24 + i, 8 + i))
    for i in range(4):
        a("s_add_u32 s24, s22, %d" % (i * 2048))
        a("buffer_store_dwordx4 v[%d:%d], v6, s[28:31], s24 offen" % (8 + 4 * i, 11 + 4 * i))
    a.rt_flush(2)
    a("s_endpgm")
    a.label(L_wd)
    a.srd(16, 12, 1536 * 640 * 2)
    a("s_sub_u32 s14, s14, 960")
    a("s_mul_i32 s20, s14, 21846")
    a("s_lshr_b32 s20, s20, 18")
    a("s_mul_i32 s21, s20, 12")
    a("s_sub_u32 s21, s14, s21")
    a("s_lshl_b32 s21, s21, 2")
    a("v_mul_u32_u24 v5, 10240, v4")
    a("v_lshl_add_u32 v5, v3, 1, v5")
    a("s_mul_i32 s22, s21, 40960")
    a("s_lshl_b32 s23, s20, 5")
    a("s_add_u32 s22, s22, s23")
    for i in range(4):
        for j in range(8):
            a("s_add_u32 s24, s22, %d" % (i * 40960 + j * 1280))
            a("buffer_load_ushort v%d, v5, s[16:19], s24 offen" % ((24 if j & 1 else 8) + 4 * i + j // 2))
    a("v_lshlrev_b32 v6, 4, v1")
    a("s_mul_i32 s22, s20, 48")
    a("s_add_u32 s22, s22, s21")
    a("s_lshl_b32 s22, s22, 10")
    a("s_add_u32 s22, s22, 0x%x" % WS_WDF)
    a("s_waitcnt vmcnt(0)")
    for i in range(16):
        a("v_lshl_or_b32 v%d, v%d, 16, v%d" % (8 + i, 24 + i, 8 + i))
    for i in range(4):
        a("buffer_store_dwordx4 v[%d:%d], v6, s[28:31], s22 offen offset:%d" % (8 + 4 * i, 11 + 4 * i, i * 1024))
    a.rt_flush(2)


K4_SLOT = 20480
K4_NS = 6
K4_PREFETCH = False
K4_LDS = K4_NS * K4_SLOT


def gelu_epilogue_tile(a, acc, T):
    for p in range(4):
        g = acc + 2 * p
        u = acc + 8 + 2 * p
        t0, t1, t2 = T, T + 2, T + 4
        a("v_cvt_pk_bf16_f32 v%d, v%d, v%d" % (t0 + 1, g, g + 1))
        a("v_cvt_pk_bf16_f32 v%d, v%d, v%d" % (t1 + 1, u, u + 1))
        a("v_lshlrev_b32 v%d, 16, v%d" % (t0, t0 + 1))
        a("v_and_b32 v%d, 0xffff0000, v%d" % (t0 + 1, t0 + 1))
        a("v_lshlrev_b32 v%d, 16, v%d" % (t1, t1 + 1))
        a("v_and_b32 v%d, 0xffff0000, v%d" % (t1 + 1, t1 + 1))
        a("v_pk_mul_f32 %s, %s, %s" % (a.P(t2), a.P(t0), a.P(t0)))
        a("v_pk_fma_f32 %s, %s, s[40:41], s[42:43]" % (a.P(t2), a.P(t2)) if False else
          "v_pk_mul_f32 %s, %s, s[40:41]" % (a.P(t2), a.P(t2)))
        a("v_pk_fma_f32 %s, %s, %s, %s" % (a.P(t2), a.P(t2), a.P(t0), a.P(t0)))
        a("v_pk_mul_f32 %s, %s, s[42:43]" % (a.P(t2), a.P(t2)))
        a("v_exp_f32 v%d, v%d" % (t2, t2))
        a("v_exp_f32 v%d, v%d" % (t2 + 1, t2 + 1))
        a("s_nop 0")
        a("v_pk_add_f32 %s, %s, s[44:45]" % (a.P(t2), a.P(t2)))
        a("v_rcp_f32 v%d, v%d" % (t2, t2))
        a("v_rcp_f32 v%d, v%d" % (t2 + 1, t2 + 1))
        a("s_nop 0")
        a("v_pk_mul_f32 %s, %s, %s" % (a.P(t2), a.P(t2), a.P(t0)))
        a("v_cvt_pk_bf16_f32 v%d, v%d, v%d" % (t2 + 1, t2, t2 + 1))
        a("v_lshlrev_b32 v%d, 16, v%d" % (t2, t2 + 1))
        a("v_and_b32 v%d, 0xffff0000, v%d" % (t2 + 1, t2 + 1))
        a("v_pk_mul_f32 %s, %s, %s" % (a.P(t2), a.P(t2), a.P(t1)))
        a("v_cvt_pk_bf16_f32 v%d, v%d, v%d" % (acc + p, t2, t2 + 1))


def gen_k4(a):
    name = "k4_kernel"
    kernel_header(a, name)
    L_end = a.newlabel("k4end")
    a("s_cmp_ge_u32 s2, 256")
    a("s_cbranch_scc1 %s" % L_end)
    a("s_load_dwordx2 s[6:7], s[0:1], 72")
    a("v_and_b32 v1, 63, v0")
    a("v_lshrrev_b32 v2, 6, v0")
    a("s_nop 0")
    a("v_readfirstlane_b32 s3, v2")
    a("s_and_b32 s13, s2, 7")
    a("s_lshr_b32 s14, s2, 3")
    a("s_and_b32 s8, s13, 3")
    a("s_lshl_b32 s8, s8, 2")
    a("s_and_b32 s15, s14, 3")
    a("s_add_u32 s8, s8, s15")
    a("s_lshr_b32 s9, s13, 2")
    a("s_lshl_b32 s9, s9, 3")
    a("s_lshr_b32 s15, s14, 2")
    a("s_add_u32 s9, s9, s15")
    a("s_bfe_u32 s10, s3, 0x10001")
    a("s_and_b32 s11, s3, 1")
    a("s_lshr_b32 s30, s3, 2")
    a("v_lshlrev_b32 v3, 4, v1")
    a("s_lshr_b32 s13, s3, 1")
    a("s_and_b32 s14, s3, 1")
    a("s_lshl_b32 s14, s14, 10")
    a("s_lshl_b32 s15, s9, 2")
    a("s_add_u32 s15, s15, s13")
    a("s_mul_i32 s20, s15, 40960")
    a("s_add_u32 s20, s20, s14")
    a("s_add_u32 s20, s20, 0x%x" % WS_LN2F)
    a("s_mul_i32 s15, s8, 6")
    a("s_add_u32 s15, s15, s13")
    a("s_mul_i32 s21, s15, 40960")
    a("s_add_u32 s21, s21, s14")
    a("s_add_u32 s21, s21, 0x%x" % WS_WGU)
    a("s_add_u32 s22, s21, %d" % (4 * 40960))
    a("s_lshl_b32 s12, s3, 10")
    a("s_lshl_b32 s13, s10, 12")
    a("s_lshl_b32 s14, s30, 10")
    a("s_add_u32 s13, s13, s14")
    a("v_add_u32 v5, s13, v3")
    a("v_add_u32 v6, %d, v5" % (3 * K4_SLOT))
    a("s_mul_i32 s13, s11, 6144")
    a("s_add_u32 s13, s13, 8192")
    a("s_add_u32 s13, s13, s14")
    a("v_add_u32 v8, s13, v3")
    a("v_add_u32 v9, %d, v8" % (3 * K4_SLOT))
    a("v_lshlrev_b32 v14, 6, v1")
    a("s_and_b32 s13, s8, 3")
    a("s_lshl_b32 s14, s9, 2")
    a("s_add_u32 s13, s13, s14")
    a("s_mul_i32 s31, s13, 40960")
    a("s_lshl_b32 s13, s3, 12")
    a("s_add_u32 s31, s31, s13")
    a("s_add_u32 s31, s31, 0x%x" % (WS_LN2F + 8192))
    a("s_cmp_ge_u32 s3, 6")
    a("s_cselect_b32 s13, 6, 0")
    a("s_sub_u32 s13, s3, s13")
    a("s_mul_i32 s14, s8, 6")
    a("s_add_u32 s13, s13, s14")
    a("s_mul_i32 s32, s13, 40960")
    a("s_and_b32 s13, s9, 7")
    a("s_lshl_b32 s13, s13, 12")
    a("s_add_u32 s32, s32, s13")
    a("s_add_u32 s32, s32, 0x%x" % (WS_WGU + 8192))
    a("s_waitcnt lgkmcnt(0)")
    a.srd(16, 6, WS_BYTES)
    a.stamp_init()
    a.stamp()
    ACC = 64
    FR = [[16 + 20 * s + 4 * i for i in range(5)] for s in range(2)]
    NST = 20
    D = K4_NS - 1
    L_g1 = a.newlabel("k4g1")
    L_join = a.newlabel("k4join")
    a("s_cmp_eq_u32 s30, 1")
    a("s_cbranch_scc1 %s" % L_g1)
    for g in range(2):
        nd = 3 if g == 0 else 2

        def dma_list(stage):
            slot = stage % K4_NS
            out = []
            for c in range(nd):
                out.append(["s_add_u32 m0, s12, %d" % (slot * K4_SLOT + c * 8192),
                            "s_nop 0",
                            "buffer_load_dwordx4 v3, s[16:19], s%d offen lds" % (20 + c),
                            "s_add_u32 s%d, s%d, 2048" % (20 + c, 20 + c)])
            return out

        def read_list(stage, st):
            slot = stage % K4_NS
            f = FR[st]
            hi = slot // 3
            so = (slot % 3) * K4_SLOT
            out = []
            for i in range(2):
                out.append("ds_read_b128 v[%d:%d], v%d offset:%d" % (f[i], f[i] + 3, 5 + hi, so + i * 2048))
            for i in range(3):
                out.append("ds_read_b128 v[%d:%d], v%d offset:%d" % (f[2 + i], f[2 + i] + 3, 8 + hi, so + i * 2048))
            return out

        def mfma_list(st, first):
            f = FR[st]
            out = []
            for i in range(2):
                for j in range(3):
                    acc = ACC + 16 * (i * 3 + j)
                    c = "0" if first else "v[%d:%d]" % (acc, acc + 15)
                    out.append("v_mfma_f32_32x32x16_bf16 v[%d:%d], v[%d:%d], v[%d:%d], %s"
                               % (acc, acc + 15, f[2 + j], f[2 + j] + 3, f[i], f[i] + 3, c))
            return out

        for s in range(D):
            for d in dma_list(s):
                for x in d:
                    a(x)
        NPF = 0
        if K4_PREFETCH:
            a("buffer_load_dword v160, v14, s[16:19], s31 offen")
            a("buffer_load_dword v161, v14, s[16:19], s32 offen")
            NPF = 2
        a("s_waitcnt vmcnt(%d)" % (nd * (D - 1) + NPF))
        a("s_barrier")
        if g == 0:
            a.stamp()
        for x in read_list(0, 0):
            a(x)
        for s in range(NST):
            issued = min(s + D - 1, NST - 1)
            mf = mfma_list(s & 1, s == 0)
            fill = [[] for _ in range(6)]
            if s + 1 < NST:
                a("s_waitcnt vmcnt(%d) lgkmcnt(0)" % (nd * (issued - (s + 1)) + (NPF if s + 1 < D else 0)))
                a("s_barrier")
                rl = read_list(s + 1, (s + 1) & 1)
                fill[0] = rl[0:2]
                fill[1] = rl[2:4]
                fill[2] = rl[4:5]
                if s + D < NST:
                    dl = dma_list(s + D)
                    for i, d in enumerate(dl):
                        fill[2 + i] = fill[2 + i] + d
            else:
                a("s_waitcnt lgkmcnt(0)")
            for i in range(6):
                a(mf[i])
                for x in fill[i]:
                    a(x)
            if g == 0 and s in (1, 10):
                a.stamp()
        if g == 0:
            a("s_branch %s" % L_join)
            a.label(L_g1)
            if a.stamps_on:
                a.nst -= 3
    a.label(L_join)
    if a.stamps_on:
        a.nst += 3
    a("s_barrier")
    a("s_nop 7")
    a.stamp()
    a("s_mul_i32 s13, s3, 12288")
    a("v_add_u32 v10, s13, v3")
    a("s_xor_b32 s13, s3, 4")
    a("s_mul_i32 s13, s13, 12288")
    a("v_add_u32 v11, s13, v3")
    L_x1 = a.newlabel("k4x1")
    L_x2 = a.newlabel("k4x2")
    a("s_cmp_eq_u32 s30, 1")
    a("s_cbranch_scc1 %s" % L_x1)
    for q in range(12):
        a("ds_write_b128 v10, v[%d:%d] offset:%d" % (ACC + 48 + 4 * q, ACC + 51 + 4 * q, q * 1024))
    a("s_branch %s" % L_x2)
    a.label(L_x1)
    for q in range(12):
        a("ds_write_b128 v10, v[%d:%d] offset:%d" % (ACC + 4 * q, ACC + 3 + 4 * q, q * 1024))
    a("s_nop 1")
    for r in range(0, 48, 2):
        a("v_pk_mov_b32 v[%d:%d], v[%d:%d], v[%d:%d] op_sel:[0,1]" % (ACC + r, ACC + r + 1, ACC + 48 + r, ACC + 49 + r, ACC + 48 + r, ACC + 49 + r))
    a.label(L_x2)
    a("s_waitcnt lgkmcnt(0)")
    a("s_barrier")
    for q in range(12):
        a("ds_read_b128 v[%d:%d], v11 offset:%d" % (ACC + 48 + 4 * q, ACC + 51 + 4 * q, q * 1024))
    a("v_bfe_u32 v12, v1, 4, 1")
    a("v_mul_u32_u24 v12, 49152, v12")
    a("v_and_b32 v13, 15, v1")
    a("v_lshl_add_u32 v12, v13, 4, v12")
    a("v_lshrrev_b32 v13, 5, v1")
    a("v_lshl_add_u32 v12, v13, 3, v12")
    a("s_lshl_b32 s13, s9, 2")
    a("s_lshl_b32 s14, s10, 1")
    a("s_add_u32 s13, s13, s14")
    a("s_add_u32 s13, s13, s30")
    a("s_mul_i32 s13, s13, 98304")
    a("s_add_u32 s13, s13, 0x%x" % WS_ACTF)
    a("s_mul_i32 s14, s8, 6")
    a("s_mul_i32 s15, s11, 3")
    a("s_add_u32 s14, s14, s15")
    a("s_lshl_b32 s14, s14, 9")
    a("s_add_u32 s13, s13, s14")
    a("s_mov_b32 s40, %s" % f32hex(0.044715))
    a("s_mov_b32 s41, %s" % f32hex(0.044715))
    k = -2.0 * math.sqrt(2.0 / math.pi) * math.log2(math.e)
    a("s_mov_b32 s42, %s" % f32hex(k))
    a("s_mov_b32 s43, %s" % f32hex(k))
    a("s_mov_b32 s44, 1.0")
    a("s_mov_b32 s45, 1.0")
    for j in range(3):
        acc = ACC + 16 * j
        a("s_waitcnt lgkmcnt(%d)" % (8 - 4 * j))
        for r in range(0, 16, 2):
            a.cadd(acc + r, acc + r, acc + 48 + r)
        gelu_epilogue_tile(a, acc, 16)
        a("buffer_store_dwordx2 v[%d:%d], v12, s[16:19], s13 offen offset:%d" % (acc, acc + 1, j * 512))
        a("buffer_store_dwordx2 v[%d:%d], v12, s[16:19], s13 offen offset:%d" % (acc + 2, acc + 3, j * 512 + 256))
    a.stamp()
    a.stamp_flush(4, 3)
    a.label(L_end)
    a("s_endpgm")
    return name, 164, 100


K5_LDS = 4 * 20 * 1024
K5_DEPTH = 6


def gen_k5(a):
    name = "k5_kernel"
    kernel_header(a, name)
    L_end = a.newlabel("k5end")
    a("s_cmp_ge_u32 s2, 256")
    a("s_cbranch_scc1 %s" % L_end)
    a("s_load_dwordx2 s[6:7], s[0:1], 72")
    a("s_load_dwordx2 s[4:5], s[0:1], 56")
    a("v_and_b32 v1, 63, v0")
    a("v_lshrrev_b32 v2, 6, v0")
    a("s_nop 0")
    a("v_readfirstlane_b32 s3, v2")
    a("s_and_b32 s13, s2, 7")
    a("s_lshr_b32 s14, s2, 3")
    a("s_and_b32 s8, s13, 1")
    a("s_lshl_b32 s8, s8, 2")
    a("s_and_b32 s15, s14, 3")
    a("s_add_u32 s8, s8, s15")
    a("s_lshr_b32 s9, s13, 1")
    a("s_lshl_b32 s9, s9, 3")
    a("s_lshr_b32 s15, s14, 2")
    a("s_add_u32 s9, s9, s15")
    a("v_lshlrev_b32 v3, 4, v1")
    a("s_mul_i32 s12, s3, 12288")
    a("s_mul_i32 s13, s9, %d" % (4 * 49152))
    a("s_add_u32 s13, s13, s12")
    a("s_add_u32 s13, s13, 0x%x" % WS_ACTF)
    for i in range(4):
        a("s_add_u32 s%d, s13, %d" % (20 + i, i * 49152))
    a("s_mul_i32 s13, s8, %d" % (5 * 49152))
    a("s_add_u32 s13, s13, s12")
    a("s_add_u32 s13, s13, 0x%x" % WS_WDF)
    for j in range(5):
        a("s_add_u32 s%d, s13, %d" % (24 + j, j * 49152))
    a("s_waitcnt lgkmcnt(0)")
    a.srd(16, 6, WS_BYTES)
    a.srd(32, 4, X_BYTES)
    a.stamp_init()
    a.stamp()
    D = K5_DEPTH
    FB = 16

    def loads(step):
        slot = step % D
        if step and step % 4 == 0:
            for i in range(9):
                a("s_add_u32 s%d, s%d, 4096" % (20 + i, 20 + i))
        for i in range(9):
            r = FB + 36 * slot + 4 * i
            a("buffer_load_dwordx4 v[%d:%d], v3, s[16:19], s%d offen offset:%d" % (r, r + 3, 20 + i, (step % 4) * 1024))

    a("v_and_b32 v4, 15, v1")
    a("v_mul_u32_u24 v4, 1280, v4")
    a("v_lshrrev_b32 v5, 4, v1")
    a("v_lshl_add_u32 v4, v5, 3, v4")
    a("s_lshl_b32 s13, s9, 2")
    a("s_add_u32 s13, s13, s3")
    a("s_mul_i32 s13, s13, 20480")
    a("s_mul_i32 s14, s8, 160")
    a("s_add_u32 s13, s13, s14")
    a("s_add_u32 s14, s13, 0x%x" % WS_H)
    for j in range(5):
        a("buffer_load_dwordx2 v[%d:%d], v4, s[16:19], s14 offen offset:%d" % (6 + 2 * j, 7 + 2 * j, j * 32))
    for s in range(D):
        loads(s)
    for s in range(12):
        rem = min(12, s + D) - (s + 1)
        a("s_waitcnt vmcnt(%d)" % (9 * rem))
        if s in (0, 1, 6, 11):
            a.stamp()
        slot = s % D
        for i in range(4):
            for j in range(5):
                acc = 4 * (i * 5 + j)
                ra = FB + 36 * slot + 4 * (4 + j)
                rb = FB + 36 * slot + 4 * i
                c = "0" if s == 0 else "a[%d:%d]" % (acc, acc + 3)
                a("v_mfma_f32_16x16x32_bf16 a[%d:%d], v[%d:%d], v[%d:%d], %s" % (acc, acc + 3, ra, ra + 3, rb, rb + 3, c))
        if s + D < 12:
            loads(s + D)
    a("s_nop 7")
    a.stamp()
    a("s_mul_i32 s15, s3, 20480")
    a("v_add_u32 v5, s15, v3")
    L_skip = []
    for i in range(4):
        lab = a.newlabel("k5sk")
        a("s_cmp_eq_u32 s3, %d" % i)
        a("s_cbranch_scc1 %s" % lab)
        for j in range(5):
            t = i * 5 + j
            a("ds_write_b128 v5, a[%d:%d] offset:%d" % (4 * t, 4 * t + 3, t * 1024))
        a.label(lab)
    L_done = a.newlabel("k5own")
    for i in range(4):
        lab = a.newlabel("k5o")
        a("s_cmp_lg_u32 s3, %d" % i)
        a("s_cbranch_scc1 %s" % lab)
        for r in range(20):
            a("v_accvgpr_read_b32 v%d, a%d" % (16 + r, 20 * i + r))
        a("s_branch %s" % L_done)
        a.label(lab)
    a.label(L_done)
    a("s_waitcnt lgkmcnt(0)")
    a("s_barrier")
    a("s_mul_i32 s15, s3, 5120")
    a("v_add_u32 v5, s15, v3")
    for o in range(1, 4):
        a("s_add_u32 s22, s3, %d" % o)
        a("s_and_b32 s22, s22, 3")
        a("s_mul_i32 s22, s22, 20480")
        a("v_add_u32 v%d, s22, v5" % (36 + o))
    for o in range(1, 4):
        for j in range(5):
            r = 40 + 20 * (o - 1) + 4 * j
            a("ds_read_b128 v[%d:%d], v%d offset:%d" % (r, r + 3, 36 + o, j * 1024))
    a("s_waitcnt lgkmcnt(0)")
    for o in range(1, 4):
        for q in range(10):
            a.cadd(16 + 2 * q, 16 + 2 * q, 40 + 20 * (o - 1) + 2 * q)
    a("s_waitcnt vmcnt(0)")
    for j in range(5):
        for p in range(2):
            d = 16 + 4 * j + 2 * p
            h = 6 + 2 * j + p
            a("v_cvt_pk_bf16_f32 v%d, v%d, v%d" % (d + 1, d, d + 1))
            a("v_lshlrev_b32 v%d, 16, v%d" % (d, d + 1))
            a("v_and_b32 v%d, 0xffff0000, v%d" % (d + 1, d + 1))
            a("v_lshlrev_b32 v40, 16, v%d" % h)
            a("v_and_b32 v41, 0xffff0000, v%d" % h)
            a.cadd(d, d, 40)
            a("v_cvt_pk_bf16_f32 v%d, v%d, v%d" % (h, d, d + 1))
        a("buffer_store_dwordx2 v[%d:%d], v4, s[32:35], s13 offen offset:%d" % (6 + 2 * j, 7 + 2 * j, j * 32))
    a.stamp()
    a.stamp_flush(5, 3)
    a.label(L_end)
    a("s_endpgm")
    return name, FB + 36 * D, 100, 80
```

```python
import math
from asmlib import *
from fft_kernels import *

WS_BYTES = 0x10000000
K2_NEXTRA = 360


def relayout_path(a, L_end):
    L_wd = a.newlabel("rl_wd")
    a("s_cmp_ge_u32 s2, %d" % (321 + K2_NEXTRA))
    a("s_cbranch_scc1 %s" % L_end)
    a("s_load_dwordx4 s[8:11], s[0:1], 32")
    a("s_load_dwordx2 s[12:13], s[0:1], 48")
    a("v_and_b32 v1, 63, v0")
    a("v_lshrrev_b32 v2, 6, v0")
    a("s_nop 0")
    a("v_readfirstlane_b32 s3, v2")
    a("s_sub_u32 s14, s2, 321")
    a("s_lshl_b32 s14, s14, 2")
    a("s_add_u32 s14, s14, s3")
    a("v_and_b32 v3, 15, v1")
    a("v_lshrrev_b32 v4, 4, v1")
    a("s_waitcnt lgkmcnt(0)")
    a.srd(28, 6, WS_BYTES)
    a("s_cmp_ge_u32 s14, 960")
    a("s_cbranch_scc1 %s" % L_wd)
    L_up = a.newlabel("rl_up")
    L_go = a.newlabel("rl_go")
    a("s_cmp_ge_u32 s14, 480")
    a("s_cbranch_scc1 %s" % L_up)
    a.srd(16, 8, 640 * 1536 * 2)
    a("s_mov_b32 s15, 0")
    a("s_branch %s" % L_go)
    a.label(L_up)
    a.srd(16, 10, 640 * 1536 * 2)
    a("s_mov_b32 s15, 1")
    a("s_sub_u32 s14, s14, 480")
    a.label(L_go)
    a("s_mul_i32 s20, s14, 52429")
    a("s_lshr_b32 s20, s20, 18")
    a("s_mul_i32 s21, s20, 5")
    a("s_sub_u32 s21, s14, s21")
    a("s_lshl_b32 s21, s21, 2")
    a("v_mul_u32_u24 v5, 24576, v4")
    a("v_lshl_add_u32 v5, v3, 1, v5")
    a("s_mul_i32 s22, s21, 98304")
    a("s_lshl_b32 s23, s20, 5")
    a("s_add_u32 s22, s22, s23")
    for i in range(4):
        for j in range(8):
            a("s_add_u32 s24, s22, %d" % (i * 98304 + j * 3072))
            a("buffer_load_ushort v%d, v5, s[16:19], s24 offen" % ((24 if j & 1 else 8) + 4 * i + j // 2))
    a("v_lshrrev_b32 v6, 1, v4")
    a("v_lshlrev_b32 v6, 10, v6")
    a("v_and_b32 v7, 1, v4")
    a("v_lshlrev_b32 v7, 9, v7")
    a("v_lshl_add_u32 v6, v3, 4, v6")
    a("v_add_u32 v6, v6, v7")
    a("s_mul_i32 s22, s20, 40960")
    a("s_lshl_b32 s23, s21, 11")
    a("s_add_u32 s22, s22, s23")
    a("s_lshl_b32 s23, s15, 8")
    a("s_add_u32 s22, s22, s23")
    a("s_add_u32 s22, s22, 0x%x" % WS_WGU)
    a("s_waitcnt vmcnt(0)")
    for i in range(16):
        a("v_lshl_or_b32 v%d, v%d, 16, v%d" % (8 + i, 24 + i, 8 + i))
    for i in range(4):
        a("s_add_u32 s24, s22, %d" % (i * 2048))
        a("buffer_store_dwordx4 v[%d:%d], v6, s[28:31], s24 offen" % (8 + 4 * i, 11 + 4 * i))
    a.rt_flush(2)
    a("s_endpgm")
    a.label(L_wd)
    a.srd(16, 12, 1536 * 640 * 2)
    a("s_sub_u32 s14, s14, 960")
    a("s_mul_i32 s20, s14, 21846")
    a("s_lshr_b32 s20, s20, 18")
    a("s_mul_i32 s21, s20, 12")
    a("s_sub_u32 s21, s14, s21")
    a("s_lshl_b32 s21, s21, 2")
    a("v_mul_u32_u24 v5, 10240, v4")
    a("v_lshl_add_u32 v5, v3, 1, v5")
    a("s_mul_i32 s22, s21, 40960")
    a("s_lshl_b32 s23, s20, 5")
    a("s_add_u32 s22, s22, s23")
    for i in range(4):
        for j in range(8):
            a("s_add_u32 s24, s22, %d" % (i * 40960 + j * 1280))
            a("buffer_load_ushort v%d, v5, s[16:19], s24 offen" % ((24 if j & 1 else 8) + 4 * i + j // 2))
    a("v_lshlrev_b32 v6, 4, v1")
    a("s_mul_i32 s22, s20, 48")
    a("s_add_u32 s22, s22, s21")
    a("s_lshl_b32 s22, s22, 10")
    a("s_add_u32 s22, s22, 0x%x" % WS_WDF)
    a("s_waitcnt vmcnt(0)")
    for i in range(16):
        a("v_lshl_or_b32 v%d, v%d, 16, v%d" % (8 + i, 24 + i, 8 + i))
    for i in range(4):
        a("buffer_store_dwordx4 v[%d:%d], v6, s[28:31], s22 offen offset:%d" % (8 + 4 * i, 11 + 4 * i, i * 1024))
    a.rt_flush(2)


K4_SLOT = 20480
K4_NS = 6
K4_PREFETCH = False
K4_LDS = K4_NS * K4_SLOT


def gelu_epilogue_tile(a, acc, T):
    for p in range(4):
        g = acc + 2 * p
        u = acc + 8 + 2 * p
        t0, t1, t2 = T, T + 2, T + 4
        a("v_cvt_pk_bf16_f32 v%d, v%d, v%d" % (t0 + 1, g, g + 1))
        a("v_cvt_pk_bf16_f32 v%d, v%d, v%d" % (t1 + 1, u, u + 1))
        a("v_lshlrev_b32 v%d, 16, v%d" % (t0, t0 + 1))
        a("v_and_b32 v%d, 0xffff0000, v%d" % (t0 + 1, t0 + 1))
        a("v_lshlrev_b32 v%d, 16, v%d" % (t1, t1 + 1))
        a("v_and_b32 v%d, 0xffff0000, v%d" % (t1 + 1, t1 + 1))
        a("v_pk_mul_f32 %s, %s, %s" % (a.P(t2), a.P(t0), a.P(t0)))
        a("v_pk_fma_f32 %s, %s, s[40:41], s[42:43]" % (a.P(t2), a.P(t2)) if False else
          "v_pk_mul_f32 %s, %s, s[40:41]" % (a.P(t2), a.P(t2)))
        a("v_pk_fma_f32 %s, %s, %s, %s" % (a.P(t2), a.P(t2), a.P(t0), a.P(t0)))
        a("v_pk_mul_f32 %s, %s, s[42:43]" % (a.P(t2), a.P(t2)))
        a("v_exp_f32 v%d, v%d" % (t2, t2))
        a("v_exp_f32 v%d, v%d" % (t2 + 1, t2 + 1))
        a("s_nop 0")
        a("v_pk_add_f32 %s, %s, s[44:45]" % (a.P(t2), a.P(t2)))
        a("v_rcp_f32 v%d, v%d" % (t2, t2))
        a("v_rcp_f32 v%d, v%d" % (t2 + 1, t2 + 1))
        a("s_nop 0")
        a("v_pk_mul_f32 %s, %s, %s" % (a.P(t2), a.P(t2), a.P(t0)))
        a("v_cvt_pk_bf16_f32 v%d, v%d, v%d" % (t2 + 1, t2, t2 + 1))
        a("v_lshlrev_b32 v%d, 16, v%d" % (t2, t2 + 1))
        a("v_and_b32 v%d, 0xffff0000, v%d" % (t2 + 1, t2 + 1))
        a("v_pk_mul_f32 %s, %s, %s" % (a.P(t2), a.P(t2), a.P(t1)))
        a("v_cvt_pk_bf16_f32 v%d, v%d, v%d" % (acc + p, t2, t2 + 1))


def gen_k4(a):
    name = "k4_kernel"
    kernel_header(a, name)
    L_end = a.newlabel("k4end")
    a("s_cmp_ge_u32 s2, 256")
    a("s_cbranch_scc1 %s" % L_end)
    a("s_load_dwordx2 s[6:7], s[0:1], 72")
    a("v_and_b32 v1, 63, v0")
    a("v_lshrrev_b32 v2, 6, v0")
    a("s_nop 0")
    a("v_readfirstlane_b32 s3, v2")
    a("s_and_b32 s13, s2, 7")
    a("s_lshr_b32 s14, s2, 3")
    a("s_and_b32 s8, s13, 3")
    a("s_lshl_b32 s8, s8, 2")
    a("s_and_b32 s15, s14, 3")
    a("s_add_u32 s8, s8, s15")
    a("s_lshr_b32 s9, s13, 2")
    a("s_lshl_b32 s9, s9, 3")
    a("s_lshr_b32 s15, s14, 2")
    a("s_add_u32 s9, s9, s15")
    a("s_bfe_u32 s10, s3, 0x10001")
    a("s_and_b32 s11, s3, 1")
    a("s_lshr_b32 s30, s3, 2")
    a("v_lshlrev_b32 v3, 4, v1")
    a("s_lshr_b32 s13, s3, 1")
    a("s_and_b32 s14, s3, 1")
    a("s_lshl_b32 s14, s14, 10")
    a("s_lshl_b32 s15, s9, 2")
    a("s_add_u32 s15, s15, s13")
    a("s_mul_i32 s20, s15, 40960")
    a("s_add_u32 s20, s20, s14")
    a("s_add_u32 s20, s20, 0x%x" % WS_LN2F)
    a("s_mul_i32 s15, s8, 6")
    a("s_add_u32 s15, s15, s13")
    a("s_mul_i32 s21, s15, 40960")
    a("s_add_u32 s21, s21, s14")
    a("s_add_u32 s21, s21, 0x%x" % WS_WGU)
    a("s_add_u32 s22, s21, %d" % (4 * 40960))
    a("s_lshl_b32 s12, s3, 10")
    a("s_lshl_b32 s13, s10, 12")
    a("s_lshl_b32 s14, s30, 10")
    a("s_add_u32 s13, s13, s14")
    a("v_add_u32 v5, s13, v3")
    a("v_add_u32 v6, %d, v5" % (3 * K4_SLOT))
    a("s_mul_i32 s13, s11, 6144")
    a("s_add_u32 s13, s13, 8192")
    a("s_add_u32 s13, s13, s14")
    a("v_add_u32 v8, s13, v3")
    a("v_add_u32 v9, %d, v8" % (3 * K4_SLOT))
    a("v_lshlrev_b32 v14, 6, v1")
    a("s_and_b32 s13, s8, 3")
    a("s_lshl_b32 s14, s9, 2")
    a("s_add_u32 s13, s13, s14")
    a("s_mul_i32 s31, s13, 40960")
    a("s_lshl_b32 s13, s3, 12")
    a("s_add_u32 s31, s31, s13")
    a("s_add_u32 s31, s31, 0x%x" % (WS_LN2F + 8192))
    a("s_cmp_ge_u32 s3, 6")
    a("s_cselect_b32 s13, 6, 0")
    a("s_sub_u32 s13, s3, s13")
    a("s_mul_i32 s14, s8, 6")
    a("s_add_u32 s13, s13, s14")
    a("s_mul_i32 s32, s13, 40960")
    a("s_and_b32 s13, s9, 7")
    a("s_lshl_b32 s13, s13, 12")
    a("s_add_u32 s32, s32, s13")
    a("s_add_u32 s32, s32, 0x%x" % (WS_WGU + 8192))
    a("s_waitcnt lgkmcnt(0)")
    a.srd(16, 6, WS_BYTES)
    a.stamp_init()
    a.stamp()
    ACC = 64
    FR = [[16 + 20 * s + 4 * i for i in range(5)] for s in range(2)]
    NST = 20
    D = K4_NS - 1
    L_g1 = a.newlabel("k4g1")
    L_join = a.newlabel("k4join")
    a("s_cmp_eq_u32 s30, 1")
    a("s_cbranch_scc1 %s" % L_g1)
    for g in range(2):
        nd = 3 if g == 0 else 2

        def dma_list(stage):
            slot = stage % K4_NS
            out = []
            for c in range(nd):
                out.append(["s_add_u32 m0, s12, %d" % (slot * K4_SLOT + c * 8192),
                            "s_nop 0",
                            "buffer_load_dwordx4 v3, s[16:19], s%d offen lds" % (20 + c),
                            "s_add_u32 s%d, s%d, 2048" % (20 + c, 20 + c)])
            return out

        def read_list(stage, st):
            slot = stage % K4_NS
            f = FR[st]
            hi = slot // 3
            so = (slot % 3) * K4_SLOT
            out = []
            for i in range(2):
                out.append("ds_read_b128 v[%d:%d], v%d offset:%d" % (f[i], f[i] + 3, 5 + hi, so + i * 2048))
            for i in range(3):
                out.append("ds_read_b128 v[%d:%d], v%d offset:%d" % (f[2 + i], f[2 + i] + 3, 8 + hi, so + i * 2048))
            return out

        def mfma_list(st, first):
            f = FR[st]
            out = []
            for i in range(2):
                for j in range(3):
                    acc = ACC + 16 * (i * 3 + j)
                    c = "0" if first else "v[%d:%d]" % (acc, acc + 15)
                    out.append("v_mfma_f32_32x32x16_bf16 v[%d:%d], v[%d:%d], v[%d:%d], %s"
                               % (acc, acc + 15, f[2 + j], f[2 + j] + 3, f[i], f[i] + 3, c))
            return out

        for s in range(D):
            for d in dma_list(s):
                for x in d:
                    a(x)
        NPF = 0
        if K4_PREFETCH:
            a("buffer_load_dword v160, v14, s[16:19], s31 offen")
            a("buffer_load_dword v161, v14, s[16:19], s32 offen")
            NPF = 2
        a("s_waitcnt vmcnt(%d)" % (nd * (D - 1) + NPF))
        a("s_barrier")
        if g == 0:
            a.stamp()
        for x in read_list(0, 0):
            a(x)
        for s in range(NST):
            issued = min(s + D - 1, NST - 1)
            mf = mfma_list(s & 1, s == 0)
            fill = [[] for _ in range(6)]
            if s + 1 < NST:
                a("s_waitcnt vmcnt(%d) lgkmcnt(0)" % (nd * (issued - (s + 1)) + (NPF if s + 1 < D else 0)))
                a("s_barrier")
                rl = read_list(s + 1, (s + 1) & 1)
                fill[0] = rl[0:2]
                fill[1] = rl[2:4]
                fill[2] = rl[4:5]
                if s + D < NST:
                    dl = dma_list(s + D)
                    for i, d in enumerate(dl):
                        fill[2 + i] = fill[2 + i] + d
            else:
                a("s_waitcnt lgkmcnt(0)")
            for i in range(6):
                a(mf[i])
                for x in fill[i]:
                    a(x)
            if g == 0 and s in (1, 10):
                a.stamp()
        if g == 0:
            a("s_branch %s" % L_join)
            a.label(L_g1)
            if a.stamps_on:
                a.nst -= 3
    a.label(L_join)
    if a.stamps_on:
        a.nst += 3
    a("s_barrier")
    a("s_nop 7")
    a.stamp()
    a("s_mul_i32 s13, s3, 12288")
    a("v_add_u32 v10, s13, v3")
    a("s_xor_b32 s13, s3, 4")
    a("s_mul_i32 s13, s13, 12288")
    a("v_add_u32 v11, s13, v3")
    L_x1 = a.newlabel("k4x1")
    L_x2 = a.newlabel("k4x2")
    a("s_cmp_eq_u32 s30, 1")
    a("s_cbranch_scc1 %s" % L_x1)
    for q in range(12):
        a("ds_write_b128 v10, v[%d:%d] offset:%d" % (ACC + 48 + 4 * q, ACC + 51 + 4 * q, q * 1024))
    a("s_branch %s" % L_x2)
    a.label(L_x1)
    for q in range(12):
        a("ds_write_b128 v10, v[%d:%d] offset:%d" % (ACC + 4 * q, ACC + 3 + 4 * q, q * 1024))
    a("s_nop 1")
    for r in range(0, 48, 2):
        a("v_pk_mov_b32 v[%d:%d], v[%d:%d], v[%d:%d] op_sel:[0,1]" % (ACC + r, ACC + r + 1, ACC + 48 + r, ACC + 49 + r, ACC + 48 + r, ACC + 49 + r))
    a.label(L_x2)
    a("s_waitcnt lgkmcnt(0)")
    a("s_barrier")
    for q in range(12):
        a("ds_read_b128 v[%d:%d], v11 offset:%d" % (ACC + 48 + 4 * q, ACC + 51 + 4 * q, q * 1024))
    a("v_bfe_u32 v12, v1, 4, 1")
    a("v_mul_u32_u24 v12, 49152, v12")
    a("v_and_b32 v13, 15, v1")
    a("v_lshl_add_u32 v12, v13, 4, v12")
    a("v_lshrrev_b32 v13, 5, v1")
    a("v_lshl_add_u32 v12, v13, 3, v12")
    a("s_lshl_b32 s13, s9, 2")
    a("s_lshl_b32 s14, s10, 1")
    a("s_add_u32 s13, s13, s14")
    a("s_add_u32 s13, s13, s30")
    a("s_mul_i32 s13, s13, 98304")
    a("s_add_u32 s13, s13, 0x%x" % WS_ACTF)
    a("s_mul_i32 s14, s8, 6")
    a("s_mul_i32 s15, s11, 3")
    a("s_add_u32 s14, s14, s15")
    a("s_lshl_b32 s14, s14, 9")
    a("s_add_u32 s13, s13, s14")
    a("s_mov_b32 s40, %s" % f32hex(0.044715))
    a("s_mov_b32 s41, %s" % f32hex(0.044715))
    k = -2.0 * math.sqrt(2.0 / math.pi) * math.log2(math.e)
    a("s_mov_b32 s42, %s" % f32hex(k))
    a("s_mov_b32 s43, %s" % f32hex(k))
    a("s_mov_b32 s44, 1.0")
    a("s_mov_b32 s45, 1.0")
    for j in range(3):
        acc = ACC + 16 * j
        a("s_waitcnt lgkmcnt(%d)" % (8 - 4 * j))
        for r in range(0, 16, 2):
            a.cadd(acc + r, acc + r, acc + 48 + r)
        gelu_epilogue_tile(a, acc, 16)
        a("buffer_store_dwordx2 v[%d:%d], v12, s[16:19], s13 offen offset:%d" % (acc, acc + 1, j * 512))
        a("buffer_store_dwordx2 v[%d:%d], v12, s[16:19], s13 offen offset:%d" % (acc + 2, acc + 3, j * 512 + 256))
    a.stamp()
    a.stamp_flush(4, 3)
    a.label(L_end)
    a("s_endpgm")
    return name, 164, 100


K5_LDS = 4 * 20 * 1024
K5_DEPTH = 6
import os
K5_XCDMAP = os.environ.get("K5_XCDMAP", "1") == "1"


def gen_k5(a):
    name = "k5_kernel"
    kernel_header(a, name)
    L_end = a.newlabel("k5end")
    a("s_cmp_ge_u32 s2, 256")
    a("s_cbranch_scc1 %s" % L_end)
    a("s_load_dwordx2 s[6:7], s[0:1], 72")
    a("s_load_dwordx2 s[4:5], s[0:1], 56")
    a("v_and_b32 v1, 63, v0")
    a("v_lshrrev_b32 v2, 6, v0")
    a("s_nop 0")
    a("v_readfirstlane_b32 s3, v2")
    if K5_XCDMAP:
        a("s_and_b32 s13, s2, 7")
        a("s_lshr_b32 s14, s2, 3")
        a("s_and_b32 s8, s13, 1")
        a("s_lshl_b32 s8, s8, 2")
        a("s_and_b32 s15, s14, 3")
        a("s_add_u32 s8, s8, s15")
        a("s_lshr_b32 s9, s13, 1")
        a("s_lshl_b32 s9, s9, 3")
        a("s_lshr_b32 s15, s14, 2")
        a("s_add_u32 s9, s9, s15")
    else:
        a("s_and_b32 s8, s2, 7")
        a("s_lshr_b32 s9, s2, 3")
    a("v_lshlrev_b32 v3, 4, v1")
    a("s_mul_i32 s12, s3, 12288")
    a("s_mul_i32 s13, s9, %d" % (4 * 49152))
    a("s_add_u32 s13, s13, s12")
    a("s_add_u32 s13, s13, 0x%x" % WS_ACTF)
    for i in range(4):
        a("s_add_u32 s%d, s13, %d" % (20 + i, i * 49152))
    a("s_mul_i32 s13, s8, %d" % (5 * 49152))
    a("s_add_u32 s13, s13, s12")
    a("s_add_u32 s13, s13, 0x%x" % WS_WDF)
    for j in range(5):
        a("s_add_u32 s%d, s13, %d" % (24 + j, j * 49152))
    a("s_waitcnt lgkmcnt(0)")
    a.srd(16, 6, WS_BYTES)
    a.srd(32, 4, X_BYTES)
    a.stamp_init()
    a.stamp()
    D = K5_DEPTH
    FB = 16

    def loads(step):
        slot = step % D
        if step and step % 4 == 0:
            for i in range(9):
                a("s_add_u32 s%d, s%d, 4096" % (20 + i, 20 + i))
        for i in range(9):
            r = FB + 36 * slot + 4 * i
            a("buffer_load_dwordx4 v[%d:%d], v3, s[16:19], s%d offen offset:%d" % (r, r + 3, 20 + i, (step % 4) * 1024))

    a("v_and_b32 v4, 15, v1")
    a("v_mul_u32_u24 v4, 1280, v4")
    a("v_lshrrev_b32 v5, 4, v1")
    a("v_lshl_add_u32 v4, v5, 3, v4")
    a("s_lshl_b32 s13, s9, 2")
    a("s_add_u32 s13, s13, s3")
    a("s_mul_i32 s13, s13, 20480")
    a("s_mul_i32 s14, s8, 160")
    a("s_add_u32 s13, s13, s14")
    a("s_add_u32 s14, s13, 0x%x" % WS_H)
    for j in range(5):
        a("buffer_load_dwordx2 v[%d:%d], v4, s[16:19], s14 offen offset:%d" % (6 + 2 * j, 7 + 2 * j, j * 32))
    for s in range(D):
        loads(s)
    for s in range(12):
        rem = min(12, s + D) - (s + 1)
        a("s_waitcnt vmcnt(%d)" % (9 * rem))
        if s in (0, 1, 6, 11):
            a.stamp()
        slot = s % D
        for i in range(4):
            for j in range(5):
                acc = 4 * (i * 5 + j)
                ra = FB + 36 * slot + 4 * (4 + j)
                rb = FB + 36 * slot + 4 * i
                c = "0" if s == 0 else "a[%d:%d]" % (acc, acc + 3)
                a("v_mfma_f32_16x16x32_bf16 a[%d:%d], v[%d:%d], v[%d:%d], %s" % (acc, acc + 3, ra, ra + 3, rb, rb + 3, c))
        if s + D < 12:
            loads(s + D)
    a("s_nop 7")
    a.stamp()
    a("s_mul_i32 s15, s3, 20480")
    a("v_add_u32 v5, s15, v3")
    L_skip = []
    for i in range(4):
        lab = a.newlabel("k5sk")
        a("s_cmp_eq_u32 s3, %d" % i)
        a("s_cbranch_scc1 %s" % lab)
        for j in range(5):
            t = i * 5 + j
            a("ds_write_b128 v5, a[%d:%d] offset:%d" % (4 * t, 4 * t + 3, t * 1024))
        a.label(lab)
    L_done = a.newlabel("k5own")
    for i in range(4):
        lab = a.newlabel("k5o")
        a("s_cmp_lg_u32 s3, %d" % i)
        a("s_cbranch_scc1 %s" % lab)
        for r in range(20):
            a("v_accvgpr_read_b32 v%d, a%d" % (16 + r, 20 * i + r))
        a("s_branch %s" % L_done)
        a.label(lab)
    a.label(L_done)
    a("s_waitcnt lgkmcnt(0)")
    a("s_barrier")
    a("s_mul_i32 s15, s3, 5120")
    a("v_add_u32 v5, s15, v3")
    for o in range(1, 4):
        a("s_add_u32 s22, s3, %d" % o)
        a("s_and_b32 s22, s22, 3")
        a("s_mul_i32 s22, s22, 20480")
        a("v_add_u32 v%d, s22, v5" % (36 + o))
    for o in range(1, 4):
        for j in range(5):
            r = 40 + 20 * (o - 1) + 4 * j
            a("ds_read_b128 v[%d:%d], v%d offset:%d" % (r, r + 3, 36 + o, j * 1024))
    a("s_waitcnt lgkmcnt(0)")
    for o in range(1, 4):
        for q in range(10):
            a.cadd(16 + 2 * q, 16 + 2 * q, 40 + 20 * (o - 1) + 2 * q)
    a("s_waitcnt vmcnt(0)")
    for j in range(5):
        for p in range(2):
            d = 16 + 4 * j + 2 * p
            h = 6 + 2 * j + p
            a("v_cvt_pk_bf16_f32 v%d, v%d, v%d" % (d + 1, d, d + 1))
            a("v_lshlrev_b32 v%d, 16, v%d" % (d, d + 1))
            a("v_and_b32 v%d, 0xffff0000, v%d" % (d + 1, d + 1))
            a("v_lshlrev_b32 v40, 16, v%d" % h)
            a("v_and_b32 v41, 0xffff0000, v%d" % h)
            a.cadd(d, d, 40)
            a("v_cvt_pk_bf16_f32 v%d, v%d, v%d" % (h, d, d + 1))
        a("buffer_store_dwordx2 v[%d:%d], v4, s[32:35], s13 offen offset:%d" % (6 + 2 * j, 7 + 2 * j, j * 32))
    a.stamp()
    a.stamp_flush(5, 3)
    a.label(L_end)
    a("s_endpgm")
    return name, FB + 36 * D, 100, 80
```

```python
import math
from asmlib import *

WS_ZT = 0x0000000
WS_YT = 0x0600000
WS_WT = 0x0C00000
WS_H = 0x1000000
WS_LN2F = 0x1400000
WS_WGU = 0x1800000
WS_WDF = 0x1C00000
WS_ACTF = 0x2000000
ZT_BYTES = 321 * 2048 * 8
WT_BYTES = 321 * 2048 * 4
X_BYTES = 2048 * 640 * 2
WF_BYTES = 2048 * 321 * 2

WSCR = 2880
TBASE = 8 * WSCR
K13_LDS = TBASE + 384 * 80

K3_NPF = int(__import__("os").environ.get("K3_NPF","64"))
K1_NWT = 96


def emit_layernorm(a, X, vt, s_tmp, s_inv640):
    t0 = vt
    a.cadd(t0, X[0], X[1])
    a.cadd(t0 + 2, X[2], X[3])
    a.cadd(t0, t0, X[4])
    a.cadd(t0, t0, t0 + 2)
    a("v_add_f32 v%d, v%d, v%d" % (t0, t0, t0 + 1))
    a.wave_sum(t0, s_tmp)
    a("v_mov_b32 v%d, s%d" % (t0 + 6, s_inv640))
    a("v_mul_f32 v%d, s%d, v%d" % (t0 + 6, s_tmp, t0 + 6))
    a("v_mov_b32 v%d, v%d" % (t0 + 7, t0 + 6))
    for j in range(5):
        a.csub(t0 + 2, X[j], t0 + 6)
        if j == 0:
            a("v_pk_mul_f32 %s, %s, %s" % (a.P(t0), a.P(t0 + 2), a.P(t0 + 2)))
        else:
            a("v_pk_fma_f32 %s, %s, %s, %s" % (a.P(t0), a.P(t0 + 2), a.P(t0 + 2), a.P(t0)))
    a("v_add_f32 v%d, v%d, v%d" % (t0, t0, t0 + 1))
    a.wave_sum(t0, s_tmp)
    a("v_mov_b32 v%d, s%d" % (t0 + 4, s_inv640))
    a("v_mul_f32 v%d, s%d, v%d" % (t0 + 4, s_tmp, t0 + 4))
    a("v_cvt_pk_bf16_f32 v%d, v%d, v%d" % (t0 + 4, t0 + 4, t0 + 6))
    a("v_and_b32 v%d, 0xffff0000, v%d" % (t0 + 6, t0 + 4))
    a("v_mov_b32 v%d, v%d" % (t0 + 7, t0 + 6))
    a("v_lshlrev_b32 v%d, 16, v%d" % (t0 + 4, t0 + 4))
    a("v_add_f32 v%d, %s, v%d" % (t0 + 4, f32hex(1e-5), t0 + 4))
    a("v_cvt_pk_bf16_f32 v%d, v%d, v%d" % (t0 + 4, t0 + 4, t0 + 4))
    a("v_lshlrev_b32 v%d, 16, v%d" % (t0 + 4, t0 + 4))
    a("v_sqrt_f32 v%d, v%d" % (t0 + 4, t0 + 4))
    a("s_nop 0")
    a("v_cvt_pk_bf16_f32 v%d, v%d, v%d" % (t0 + 4, t0 + 4, t0 + 4))
    a("v_lshlrev_b32 v%d, 16, v%d" % (t0 + 4, t0 + 4))
    a("v_rcp_f32 v%d, v%d" % (t0 + 5, t0 + 4))
    a("s_nop 0")
    a("v_fma_f32 v%d, -v%d, v%d, 2.0" % (t0 + 4, t0 + 4, t0 + 5))
    a("v_mul_f32 v%d, v%d, v%d" % (t0 + 4, t0 + 4, t0 + 5))
    a("v_mov_b32 v%d, v%d" % (t0 + 5, t0 + 4))
    for j in range(5):
        x = X[j]
        a.csub(x, x, t0 + 6)
        a("v_cvt_pk_bf16_f32 v%d, v%d, v%d" % (x + 1, x, x + 1))
        a("v_lshlrev_b32 v%d, 16, v%d" % (x, x + 1))
        a("v_and_b32 v%d, 0xffff0000, v%d" % (x + 1, x + 1))
        a("v_pk_mul_f32 %s, %s, %s" % (a.P(x), a.P(x), a.P(t0 + 4)))
        a("v_cvt_pk_bf16_f32 v%d, v%d, v%d" % (t0 + 8 + j, x, x + 1))
        a("v_lshlrev_b32 v%d, 16, v%d" % (x, t0 + 8 + j))
        a("v_and_b32 v%d, 0xffff0000, v%d" % (x + 1, t0 + 8 + j))
    return [t0 + 8 + j for j in range(5)]


def fft_consts(a, s0):
    c = {}
    names = [("r2", 1 / math.sqrt(2)), ("c1", math.cos(2 * math.pi / 5)), ("c2", math.cos(4 * math.pi / 5)),
             ("s1", math.sin(2 * math.pi / 5)), ("s2", math.sin(4 * math.pi / 5))]
    for i, (n, v) in enumerate(names):
        c[n] = s0 + 2 * i
        a.sconst_pair(s0 + 2 * i, v)
    return c


def gen_k1(a, rl=None, nrl=0):
    name = "k1_kernel"
    kernel_header(a, name)
    L_wt = a.newlabel("k1wt")
    L_end = a.newlabel("k1end")
    a("s_load_dwordx2 s[4:5], s[0:1], 0")
    a("s_load_dwordx4 s[8:11], s[0:1], 8")
    a("s_load_dwordx2 s[6:7], s[0:1], 72")
    a("v_and_b32 v1, 63, v0")
    a("v_lshrrev_b32 v2, 6, v0")
    a("s_nop 0")
    a("v_readfirstlane_b32 s3, v2")
    a("s_cmp_ge_u32 s2, 256")
    a("s_cbranch_scc1 %s" % L_wt)
    C = fft_consts(a, 40)
    a("s_mov_b32 s50, %s" % f32hex(1.0 / 640))
    a("s_and_b32 s12, s2, 7")
    a("s_lshl_b32 s12, s12, 5")
    a("s_lshr_b32 s13, s2, 3")
    a("s_add_u32 s51, s12, s13")
    a("s_lshl_b32 s12, s51, 3")
    a("s_add_u32 s12, s12, s3")
    a("s_mul_i32 s13, s12, 1280")
    a("v_lshlrev_b32 v3, 2, v1")
    a("s_waitcnt lgkmcnt(0)")
    a.srd(16, 4, X_BYTES)
    a.srd_off(20, 6, WS_ZT, ZT_BYTES)
    a.stamp_init()
    a.stamp()
    for j in range(5):
        a("buffer_load_dword v%d, v3, s[16:19], s13 offen offset:%d" % (5 + j, j * 256))
    W1 = [None, 40, 42, 44, 46]
    a("v_cvt_f32_u32 v4, v1")
    a("v_mul_f32 v10, %s, v4" % f32hex(-1.0 / 320))
    a.sincos_pair(40, 10)
    a("s_nop 0")
    a.twiddle_powers(W1, 4, 12)
    W2 = [None] + [48 + 2 * i for i in range(7)]
    a("v_and_b32 v10, 7, v1")
    a("v_cvt_f32_u32 v10, v10")
    a("v_mul_f32 v10, %s, v10" % f32hex(-1.0 / 64))
    a.sincos_pair(48, 10)
    a("s_nop 0")
    a.twiddle_powers(W2, 7, 12)
    W3 = [62 + 2 * j for j in range(5)]
    for j in range(5):
        a("v_mov_b32 v10, %s" % f32hex(64.0 * j / 640 + 0.5))
        a("v_fmac_f32 v10, %s, v4" % f32hex(1.0 / 640))
        a("v_sin_f32 v%d, v10" % W3[j])
        a("v_cos_f32 v%d, v10" % (W3[j] + 1))
    a("s_mul_i32 s14, s3, %d" % WSCR)
    a("v_lshlrev_b32 v72, 3, v1")
    a("v_add_u32 v72, s14, v72")
    a("v_lshrrev_b32 v73, 3, v1")
    a("v_mul_u32_u24 v74, 576, v73")
    a("v_and_b32 v75, 7, v1")
    a("v_lshlrev_b32 v76, 3, v75")
    a("v_add3_u32 v76, v74, v76, s14")
    a("v_mul_u32_u24 v77, 72, v75")
    a("v_add3_u32 v77, v74, v77, s14")
    a("v_mul_u32_u24 v78, 5, v75")
    a("v_add_u32 v78, v78, v73")
    a("v_lshlrev_b32 v78, 3, v78")
    a("v_add_u32 v78, s14, v78")
    a("v_sub_u32 v79, 320, v1")
    a("v_lshlrev_b32 v79, 3, v79")
    a("v_add_u32 v79, s14, v79")
    a("v_mul_u32_u24 v80, 80, v1")
    a("s_lshl_b32 s15, s3, 3")
    a("s_add_u32 s15, s15, %d" % TBASE)
    a("v_add_u32 v80, s15, v80")
    X = [14, 16, 18, 20, 22]
    a.stamp()
    a("s_waitcnt vmcnt(0)")
    a.stamp()
    for j in range(5):
        a("v_lshlrev_b32 v%d, 16, v%d" % (X[j], 5 + j))
        a("v_and_b32 v%d, 0xffff0000, v%d" % (X[j] + 1, 5 + j))
    emit_layernorm(a, X, 24, 38, 50)
    a.stamp()
    pool = [24, 26, 28, 30, 32, 34, 36, 38]
    A = a.radix5(X, pool, -1, C["c1"], C["c2"], C["s1"], C["s2"])
    t = pool.pop()
    for k1 in range(1, 5):
        a.cmul(A[k1], A[k1], W1[k1], t)
    pool.append(t)
    for k1 in range(5):
        a("ds_write_b64 v72, %s offset:%d" % (a.P(A[k1]), k1 * 576))
    pool += A
    a("s_waitcnt lgkmcnt(0)")
    B = [pool.pop() for _ in range(8)]
    for m1 in range(8):
        a("ds_read_b64 %s, v76 offset:%d" % (a.P(B[m1]), m1 * 64))
    a("s_waitcnt lgkmcnt(0)")
    B = a.radix8(B, pool, -1, C["r2"])
    t = pool.pop()
    for q1 in range(1, 8):
        a.cmul(B[q1], B[q1], W2[q1], t)
    pool.append(t)
    a("v_cmp_gt_u32 vcc, 40, v1")
    a("s_and_saveexec_b64 s[32:33], vcc")
    for q1 in range(8):
        a("ds_write_b64 v76, %s offset:%d" % (a.P(B[q1]), q1 * 72))
    a("s_mov_b64 exec, s[32:33]")
    pool += B
    a("s_waitcnt lgkmcnt(0)")
    B = [pool.pop() for _ in range(8)]
    for m2 in range(8):
        a("ds_read_b64 %s, v77 offset:%d" % (a.P(B[m2]), m2 * 8))
    a("s_waitcnt lgkmcnt(0)")
    B = a.radix8(B, pool, -1, C["r2"])
    a("s_mov_b64 exec, vcc")
    for q2 in range(8):
        a("ds_write_b64 v78, %s offset:%d" % (a.P(B[q2]), q2 * 320))
    a("s_mov_b64 exec, 1")
    a("ds_write_b64 v78, %s offset:%d" % (a.P(B[0]), 320 * 8))
    a("s_mov_b64 exec, s[32:33]")
    pool += B
    a("s_waitcnt lgkmcnt(0)")
    Zk = [pool.pop() for _ in range(5)]
    Zm = [pool.pop() for _ in range(5)]
    a("v_subrev_u32 v81, 2048, v79")
    for j in range(5):
        a("ds_read_b64 %s, v72 offset:%d" % (a.P(Zk[j]), j * 512))
        a("ds_read_b64 %s, v81 offset:%d" % (a.P(Zm[j]), 2048 - j * 512))
    a("s_waitcnt lgkmcnt(0)")
    S = pool.pop()
    t = pool.pop()
    for j in range(5):
        zk, zm = Zk[j], Zm[j]
        a("v_pk_add_f32 %s, %s, %s neg_hi:[0,1]" % (a.P(S), a.P(zk), a.P(zm)))
        a("v_pk_add_f32 %s, %s, %s neg_lo:[0,1]" % (a.P(zk), a.P(zk), a.P(zm)))
        if j == 0:
            a("v_sub_f32 v%d, v%d, v%d" % (zm, S, zk + 1))
            a("v_mov_b32 v%d, 0" % (zm + 1))
        a.cmul_acc(zk, zk, W3[j], S, t)
        a("ds_write_b64 v80, %s offset:%d" % (a.P(zk), j * 64 * 80))
        if j == 0:
            a("s_mov_b64 exec, 1")
            a("ds_write_b64 v80, %s offset:%d" % (a.P(zm), 320 * 80))
            a("s_mov_b64 exec, s[32:33]")
    a("s_waitcnt lgkmcnt(0)")
    a.stamp()
    a("s_barrier")
    a.stamp()
    a("v_lshrrev_b32 v4, 2, v0")
    a("v_and_b32 v5, 3, v0")
    a("v_mul_u32_u24 v6, 80, v4")
    a("v_lshlrev_b32 v5, 4, v5")
    a("v_add3_u32 v6, v6, v5, %d" % 0)
    a("v_add_u32 v6, %d, v6" % TBASE)
    a("v_lshlrev_b32 v7, 14, v4")
    a("v_add_u32 v7, v7, v5")
    a("s_lshl_b32 s13, s51, 6")
    for r in range(3):
        a("ds_read_b128 v[%d:%d], v6 offset:%d" % (8 + 4 * r, 11 + 4 * r, r * 128 * 80))
    a("s_add_u32 s24, s13, %d" % (128 * 16384))
    a("s_add_u32 s25, s13, %d" % (256 * 16384))
    a("s_waitcnt lgkmcnt(2)")
    a("buffer_store_dwordx4 v[8:11], v7, s[20:23], s13 offen")
    a("s_waitcnt lgkmcnt(1)")
    a("buffer_store_dwordx4 v[12:15], v7, s[20:23], s24 offen")
    a("s_waitcnt lgkmcnt(0)")
    a("v_cmp_gt_u32 vcc, %d, v0" % (1284 - 1024))
    a("s_and_saveexec_b64 s[32:33], vcc")
    a("buffer_store_dwordx4 v[16:19], v7, s[20:23], s25 offen")
    a.stamp()
    a.stamp_flush(1, 3)
    a("s_endpgm")
    a.label(L_wt)
    L_rl = a.newlabel("k1rl")
    a("s_cmp_ge_u32 s2, %d" % (256 + K1_NWT))
    a("s_cbranch_scc1 %s" % L_rl)
    a("s_sub_u32 s12, s2, 256")
    a("s_lshl_b32 s12, s12, 3")
    a("s_add_u32 s12, s12, s3")
    a("s_mul_i32 s13, s12, 43691")
    a("s_lshr_b32 s13, s13, 18")
    a("s_mul_i32 s14, s13, 6")
    a("s_sub_u32 s14, s12, s14")
    a("s_lshl_b32 s14, s14, 6")
    a("v_add_u32 v3, s14, v1")
    a("s_waitcnt lgkmcnt(0)")
    a.srd(16, 8, WF_BYTES)
    a.srd(20, 10, WF_BYTES)
    a.srd_off(24, 6, WS_WT, WT_BYTES)
    a("v_cmp_gt_u32 vcc, 321, v3")
    a("s_and_saveexec_b64 s[32:33], vcc")
    a("s_cbranch_execz %s" % L_end)
    a("v_lshlrev_b32 v4, 1, v3")
    a("v_lshlrev_b32 v5, 13, v3")
    a("s_lshl_b32 s28, s13, 2")
    a("s_and_b32 s29, s28, 7")
    a("s_lshl_b32 s29, s29, 6")
    a("s_lshr_b32 s30, s28, 3")
    a("s_and_b32 s30, s30, 7")
    a("s_lshl_b32 s30, s30, 3")
    a("s_lshr_b32 s31, s28, 6")
    a("s_add_u32 s29, s29, s30")
    a("s_add_u32 s29, s29, s31")
    a("s_mul_i32 s29, s29, 642")
    for i in range(4):
        for tt in range(4):
            k = 64 * i + 512 * tt
            a("s_add_u32 s34, s29, %d" % (k * 642))
            a("buffer_load_ushort v%d, v4, s[16:19], s34 offen" % (8 + 4 * i + tt))
            a("buffer_load_ushort v%d, v4, s[20:23], s34 offen" % (24 + 4 * i + tt))
    a("s_lshl_b32 s28, s28, 4")
    a("s_waitcnt vmcnt(0)")
    for i in range(16):
        a("v_lshl_or_b32 v%d, v%d, 16, v%d" % (8 + i, 24 + i, 8 + i))
    for i in range(4):
        a("buffer_store_dwordx4 v[%d:%d], v5, s[24:27], s28 offen offset:%d" % (8 + 4 * i, 11 + 4 * i, 16 * i))
    a.rt_flush(1)
    a("s_endpgm")
    a.label(L_rl)
    if nrl:
        a("s_cmp_ge_u32 s2, %d" % (256 + K1_NWT + nrl))
        a("s_cbranch_scc1 %s" % L_end)
        a("s_sub_u32 s14, s2, %d" % (256 + K1_NWT))
        a("s_lshl_b32 s14, s14, 3")
        a("s_add_u32 s14, s14, s3")
        a("s_waitcnt lgkmcnt(0)")
        rl(a, 1)
    a.label(L_end)
    a("s_endpgm")
    return name, 84, 100


K2_PAD = 36
K2_BUF = 8 * 8 * K2_PAD * 8
K2_LDS = 2 * K2_BUF


def gen_k2(a, extra_path=None, n_extra=0):
    name = "k2_kernel"
    kernel_header(a, name)
    L_x = a.newlabel("k2x")
    L_end = a.newlabel("k2end")
    a("s_load_dwordx2 s[6:7], s[0:1], 72")
    a("s_cmp_ge_u32 s2, 321")
    a("s_cbranch_scc1 %s" % L_x)
    C = fft_consts(a, 40)
    a("s_lshl_b32 s12, s2, 14")
    a("s_lshl_b32 s13, s2, 13")
    a("v_lshlrev_b32 v1, 3, v0")
    a("v_lshlrev_b32 v2, 5, v0")
    a("s_waitcnt lgkmcnt(0)")
    a.srd_off(16, 6, WS_ZT, ZT_BYTES)
    a.srd_off(20, 6, WS_YT, ZT_BYTES)
    a.srd_off(24, 6, WS_WT, WT_BYTES)
    a.stamp_init()
    a.stamp()
    X = [4 + 2 * i for i in range(8)]
    for n1 in range(8):
        a("buffer_load_dwordx2 %s, v1, s[16:19], s12 offen offset:%d" % (a.P(X[n1]), (n1 * 2048) % 4096) if n1 < 2 else
          "buffer_load_dwordx2 %s, v1, s[16:19], s%d offen" % (a.P(X[n1]), 28 + n1))
        if n1 == 1:
            for m in range(2, 8):
                a("s_add_u32 s%d, s12, %d" % (28 + m, m * 2048))
    a("buffer_load_dwordx4 v[92:95], v2, s[24:27], s13 offen")
    a("buffer_load_dwordx4 v[96:99], v2, s[24:27], s13 offen offset:16")
    W1 = [None] + [40 + 2 * i for i in range(7)]
    W2 = [None] + [54 + 2 * i for i in range(7)]
    W3 = [None] + [68 + 2 * i for i in range(7)]
    a("v_cvt_f32_u32 v20, v0")
    a("v_mul_f32 v20, %s, v20" % f32hex(-1.0 / 2048))
    a.sincos_pair(40, 20)
    a("v_and_b32 v21, 31, v0")
    a("v_cvt_f32_u32 v20, v21")
    a("v_mul_f32 v20, %s, v20" % f32hex(-1.0 / 256))
    a.sincos_pair(54, 20)
    a("v_and_b32 v22, 3, v0")
    a("v_cvt_f32_u32 v20, v22")
    a("v_mul_f32 v20, %s, v20" % f32hex(-1.0 / 32))
    a.sincos_pair(68, 20)
    a("s_nop 0")
    a.twiddle_powers(W1, 7, 24)
    a.twiddle_powers(W2, 7, 24)
    a.twiddle_powers(W3, 7, 24)
    a("v_lshrrev_b32 v23, 5, v0")
    a("v_mul_u32_u24 v82, 36, v23")
    a("v_add_u32 v82, v82, v21")
    a("v_lshlrev_b32 v82, 3, v82")
    a("v_mul_u32_u24 v83, 288, v23")
    a("v_add_u32 v84, v83, v22")
    a("v_add_u32 v83, v83, v21")
    a("v_lshlrev_b32 v83, 3, v83")
    a("v_bfe_u32 v24, v0, 2, 3")
    a("v_mul_u32_u24 v24, 36, v24")
    a("v_add_u32 v84, v84, v24")
    a("v_mul_u32_u24 v85, 7, v22")
    a("v_add_u32 v85, v85, v84")
    a("v_lshlrev_b32 v84, 3, v84")
    a("v_lshlrev_b32 v85, 3, v85")
    pool = [20, 22, 24, 26, 28, 30, 32, 34, 36, 38]
    buf = [0]

    def exch(regs, waddr, wstride, raddr, rstride):
        b = buf[0] * K2_BUF
        buf[0] ^= 1
        for i, r in enumerate(regs):
            a("ds_write_b64 v%d, %s offset:%d" % (waddr, a.P(r), b + i * wstride))
        a("s_waitcnt lgkmcnt(0)")
        a("s_barrier")
        for i, r in enumerate(regs):
            a("ds_read_b64 %s, v%d offset:%d" % (a.P(r), raddr, b + i * rstride))
        a("s_waitcnt lgkmcnt(0)")

    def twid(regs, W, conj):
        t = pool.pop()
        for i in range(1, 8):
            a.cmul(regs[i], regs[i], W[i], t, conj=conj)
        pool.append(t)

    a.stamp()
    a("s_waitcnt vmcnt(2)")
    a.stamp()
    R = a.radix8(X, pool, -1, C["r2"])
    twid(R, W1, False)
    exch(R, 82, 2304, 83, 288)
    R = a.radix8(R, pool, -1, C["r2"])
    twid(R, W2, False)
    exch(R, 83, 288, 84, 32)
    R = a.radix8(R, pool, -1, C["r2"])
    twid(R, W3, False)
    exch(R, 84, 32, 85, 8)
    Ra = a.radix4(R[0:4], pool, -1)
    Rb = a.radix4(R[4:8], pool, -1)
    R = Ra + Rb
    a.stamp()
    a("s_waitcnt vmcnt(0)")
    a.stamp()
    t = pool.pop()
    w = pool.pop()
    for i in range(8):
        a("v_lshlrev_b32 v%d, 16, v%d" % (w, 92 + i))
        a("v_and_b32 v%d, 0xffff0000, v%d" % (w + 1, 92 + i))
        a.cmul(R[i], R[i], w, t)
    pool.append(t)
    pool.append(w)
    Ra = a.radix4(R[0:4], pool, +1)
    Rb = a.radix4(R[4:8], pool, +1)
    R = Ra + Rb
    exch(R, 85, 8, 84, 32)
    twid(R, W3, True)
    R = a.radix8(R, pool, +1, C["r2"])
    exch(R, 84, 32, 83, 288)
    twid(R, W2, True)
    R = a.radix8(R, pool, +1, C["r2"])
    exch(R, 83, 288, 82, 2304)
    twid(R, W1, True)
    R = a.radix8(R, pool, +1, C["r2"])
    a("v_lshrrev_b32 v86, 3, v0")
    a("v_mul_u32_u24 v86, 20544, v86")
    a("v_and_b32 v87, 7, v0")
    a("v_lshl_add_u32 v86, v87, 3, v86")
    a("s_lshl_b32 s12, s2, 6")
    for n1 in range(8):
        a("s_add_u32 s13, s12, %d" % (n1 * 32 * 20544))
        a("buffer_store_dwordx2 %s, v86, s[20:23], s13 offen" % a.P(R[n1]))
    a.stamp()
    if a.stamps_on:
        a("v_lshrrev_b32 v2, 6, v0")
        a("s_nop 0")
        a("v_readfirstlane_b32 s3, v2")
    a.stamp_flush(2, 3)
    a("s_endpgm")
    a.label(L_x)
    if extra_path is not None:
        extra_path(a, L_end)
    a.label(L_end)
    a("s_endpgm")
    return name, 100, 100


def gen_k3(a, rl=None, nrl=0):
    name = "k3_kernel"
    kernel_header(a, name)
    L_end = a.newlabel("k3end")
    L_pf = a.newlabel("k3pf")
    a("s_cmp_ge_u32 s2, 256")
    a("s_cbranch_scc1 %s" % L_pf)
    a("s_load_dwordx2 s[4:5], s[0:1], 0")
    a("s_load_dwordx2 s[6:7], s[0:1], 72")
    a("v_and_b32 v1, 63, v0")
    a("v_lshrrev_b32 v2, 6, v0")
    a("s_nop 0")
    a("v_readfirstlane_b32 s3, v2")
    C = fft_consts(a, 40)
    a("s_mov_b32 s50, %s" % f32hex(1.0 / 640))
    a.sconst_pair(52, 1.0 / (640.0 * 2048.0 * 2.0))
    a("s_and_b32 s12, s2, 7")
    a("s_lshl_b32 s12, s12, 5")
    a("s_lshr_b32 s13, s2, 3")
    a("s_add_u32 s51, s12, s13")
    a("s_lshl_b32 s12, s51, 3")
    a("s_add_u32 s12, s12, s3")
    a("s_mul_i32 s13, s12, 1280")
    a("v_lshlrev_b32 v3, 2, v1")
    a("v_lshrrev_b32 v4, 2, v0")
    a("v_and_b32 v5, 3, v0")
    a("v_mul_u32_u24 v6, 80, v4")
    a("v_lshlrev_b32 v5, 4, v5")
    a("v_add_u32 v6, v6, v5")
    a("v_add_u32 v6, %d, v6" % TBASE)
    a("v_lshlrev_b32 v7, 4, v0")
    a("s_mul_i32 s34, s51, 20544")
    a("s_add_u32 s35, s34, 8192")
    a("s_add_u32 s36, s34, 16384")
    a("s_waitcnt lgkmcnt(0)")
    a.srd(16, 4, X_BYTES)
    a.srd_off(20, 6, WS_YT, ZT_BYTES)
    a.srd_off(24, 6, WS_H, X_BYTES)
    a.srd_off(28, 6, WS_LN2F, X_BYTES)
    a.stamp_init()
    a.stamp()
    a("buffer_load_dwordx4 v[8:11], v7, s[20:23], s34 offen")
    a("buffer_load_dwordx4 v[12:15], v7, s[20:23], s35 offen")
    a("buffer_load_dwordx4 v[16:19], v7, s[20:23], s36 offen")
    for j in range(5):
        a("buffer_load_dword v%d, v3, s[16:19], s13 offen offset:%d" % (84 + j, j * 256))
    W1 = [None, 40, 42, 44, 46]
    a("v_cvt_f32_u32 v20, v1")
    a("v_mul_f32 v21, %s, v20" % f32hex(-1.0 / 320))
    a.sincos_pair(40, 21)
    a("s_nop 0")
    a.twiddle_powers(W1, 4, 22)
    W2 = [None] + [48 + 2 * i for i in range(7)]
    a("v_and_b32 v21, 7, v1")
    a("v_cvt_f32_u32 v21, v21")
    a("v_mul_f32 v21, %s, v21" % f32hex(-1.0 / 64))
    a.sincos_pair(48, 21)
    a("s_nop 0")
    a.twiddle_powers(W2, 7, 22)
    W3 = [62 + 2 * j for j in range(5)]
    for j in range(5):
        a("v_mov_b32 v21, %s" % f32hex(-64.0 * j / 640))
        a("v_fmac_f32 v21, %s, v20" % f32hex(-1.0 / 640))
        a("v_sin_f32 v%d, v21" % W3[j])
        a("v_cos_f32 v%d, v21" % (W3[j] + 1))
    a("s_mul_i32 s14, s3, %d" % WSCR)
    a("v_lshlrev_b32 v72, 3, v1")
    a("v_add_u32 v72, s14, v72")
    a("v_lshrrev_b32 v73, 3, v1")
    a("v_mul_u32_u24 v74, 576, v73")
    a("v_and_b32 v75, 7, v1")
    a("v_lshlrev_b32 v76, 3, v75")
    a("v_add3_u32 v76, v74, v76, s14")
    a("v_mul_u32_u24 v77, 72, v75")
    a("v_add3_u32 v77, v74, v77, s14")
    a("v_mul_u32_u24 v78, 5, v75")
    a("v_add_u32 v78, v78, v73")
    a("v_lshlrev_b32 v78, 3, v78")
    a("v_add_u32 v78, s14, v78")
    a("s_lshl_b32 s15, s3, 3")
    a("s_add_u32 s15, s15, %d" % TBASE)
    a("v_mul_u32_u24 v80, 80, v1")
    a("v_add_u32 v80, s15, v80")
    a("v_sub_u32 v81, 64, v1")
    a("v_mul_u32_u24 v81, 80, v81")
    a("v_add_u32 v81, s15, v81")
    a("v_cmp_gt_u32 vcc, %d, v0" % (1284 - 1024))
    a("s_and_saveexec_b64 s[32:33], vcc")
    a.stamp()
    a("s_waitcnt vmcnt(5)")
    a.stamp()
    a("ds_write_b128 v6, v[16:19] offset:%d" % (2 * 128 * 80))
    a("s_mov_b64 exec, s[32:33]")
    a("ds_write_b128 v6, v[8:11]")
    a("ds_write_b128 v6, v[12:15] offset:%d" % (128 * 80))
    a("s_waitcnt lgkmcnt(0)")
    a("s_barrier")
    a.stamp()
    pool = [8, 10, 12, 14, 16, 18, 20, 22, 24, 26, 28, 30, 32, 34, 36, 38]
    Yk = [pool.pop() for _ in range(5)]
    Ym = [pool.pop() for _ in range(5)]
    for j in range(5):
        a("ds_read_b64 %s, v80 offset:%d" % (a.P(Yk[j]), j * 5120))
        a("ds_read_b64 %s, v81 offset:%d" % (a.P(Ym[j]), (4 - j) * 5120))
    a("s_waitcnt lgkmcnt(0)")
    a("s_mov_b64 exec, 1")
    a("v_mov_b32 v%d, 0" % (Yk[0] + 1))
    a("v_mov_b32 v%d, 0" % (Ym[0] + 1))
    a("s_mov_b64 exec, s[32:33]")
    S = pool.pop()
    t = pool.pop()
    for j in range(5):
        yk, ym = Yk[j], Ym[j]
        a("v_pk_add_f32 %s, %s, %s neg_hi:[0,1]" % (a.P(S), a.P(yk), a.P(ym)))
        a("v_pk_add_f32 %s, %s, %s neg_lo:[0,1]" % (a.P(yk), a.P(yk), a.P(ym)))
        a.cmul_acc(yk, yk, W3[j], S, t)
        a("ds_write_b64 v72, %s offset:%d" % (a.P(yk), j * 512))
    pool += [S, t] + Yk + Ym
    a("s_waitcnt lgkmcnt(0)")
    B = [pool.pop() for _ in range(8)]
    for q2 in range(8):
        a("ds_read_b64 %s, v78 offset:%d" % (a.P(B[q2]), q2 * 320))
    a("s_waitcnt lgkmcnt(0)")
    B = a.radix8(B, pool, +1, C["r2"])
    t = pool.pop()
    for m2 in range(1, 8):
        a.cmul(B[m2], B[m2], W2[m2], t, conj=True)
    pool.append(t)
    a("v_cmp_gt_u32 vcc, 40, v1")
    a("s_and_saveexec_b64 s[32:33], vcc")
    for m2 in range(8):
        a("ds_write_b64 v77, %s offset:%d" % (a.P(B[m2]), m2 * 8))
    a("s_mov_b64 exec, s[32:33]")
    pool += B
    a("s_waitcnt lgkmcnt(0)")
    B = [pool.pop() for _ in range(8)]
    for q1 in range(8):
        a("ds_read_b64 %s, v76 offset:%d" % (a.P(B[q1]), q1 * 72))
    a("s_waitcnt lgkmcnt(0)")
    B = a.radix8(B, pool, +1, C["r2"])
    a("s_mov_b64 exec, vcc")
    for m1 in range(8):
        a("ds_write_b64 v76, %s offset:%d" % (a.P(B[m1]), m1 * 64))
    a("s_mov_b64 exec, s[32:33]")
    pool += B
    a("s_waitcnt lgkmcnt(0)")
    A = [pool.pop() for _ in range(5)]
    for k1 in range(5):
        a("ds_read_b64 %s, v72 offset:%d" % (a.P(A[k1]), k1 * 576))
    a("s_waitcnt lgkmcnt(0)")
    t = pool.pop()
    for k1 in range(1, 5):
        a.cmul(A[k1], A[k1], W1[k1], t, conj=True)
    pool.append(t)
    Z = a.radix5(A, pool, +1, C["c1"], C["c2"], C["s1"], C["s2"])
    a.stamp()
    a("s_waitcnt vmcnt(0)")
    t = pool.pop()
    for j in range(5):
        z = Z[j]
        a.cmul_real(z, z, 52)
        a("v_cvt_pk_bf16_f32 v%d, v%d, v%d" % (z + 1, z, z + 1))
        a("v_lshlrev_b32 v%d, 16, v%d" % (z, z + 1))
        a("v_and_b32 v%d, 0xffff0000, v%d" % (z + 1, z + 1))
        a("v_lshlrev_b32 v%d, 16, v%d" % (t, 84 + j))
        a("v_and_b32 v%d, 0xffff0000, v%d" % (t + 1, 84 + j))
        a.cadd(z, z, t)
        a("v_cvt_pk_bf16_f32 v%d, v%d, v%d" % (84 + j, z, z + 1))
        a("v_lshlrev_b32 v%d, 16, v%d" % (z, 84 + j))
        a("v_and_b32 v%d, 0xffff0000, v%d" % (z + 1, 84 + j))
        a("buffer_store_dword v%d, v3, s[24:27], s13 offen offset:%d" % (84 + j, j * 256))
    pk = emit_layernorm(a, Z, 40, 38, 50)
    a("v_lshrrev_b32 v60, 3, v1")
    a("v_lshlrev_b32 v60, 10, v60")
    a("v_bfe_u32 v61, v1, 2, 1")
    a("v_lshlrev_b32 v61, 9, v61")
    a("v_and_b32 v62, 3, v1")
    a("v_lshlrev_b32 v62, 2, v62")
    a("v_add3_u32 v60, v60, v61, v62")
    a("s_lshr_b32 s36, s12, 5")
    a("s_mul_i32 s36, s36, 40960")
    a("s_and_b32 s37, s12, 31")
    a("s_lshl_b32 s37, s37, 4")
    a("s_add_u32 s36, s36, s37")
    for j in range(5):
        a("s_add_u32 s37, s36, %d" % (j * 8192))
        a("buffer_store_dword v%d, v60, s[28:31], s37 offen" % pk[j])
    a.stamp()
    a.stamp_flush(3, 3)
    a("s_endpgm")
    a.label(L_pf)
    L_rl = a.newlabel("k3rl")
    a("s_load_dwordx2 s[6:7], s[0:1], 72")
    a("v_and_b32 v1, 63, v0")
    a("v_lshrrev_b32 v2, 6, v0")
    a("s_nop 0")
    a("v_readfirstlane_b32 s3, v2")
    a("s_cmp_ge_u32 s2, %d" % (256 + K3_NPF))
    a("s_cbranch_scc1 %s" % L_rl)
    a("s_and_b32 s12, s2, 1")
    a("s_lshl_b32 s12, s12, 3")
    a("s_sub_u32 s13, s2, 256")
    a("s_lshr_b32 s13, s13, 3")
    a("s_add_u32 s12, s12, s13")
    a("s_mul_i32 s12, s12, 245760")
    a("s_mul_i32 s13, s3, 30720")
    a("s_add_u32 s12, s12, s13")
    a("v_lshlrev_b32 v3, 6, v1")
    a("s_waitcnt lgkmcnt(0)")
    a.srd_off(16, 6, WS_WGU, 3840 * 1024)
    for i in range(8):
        a("buffer_load_dword v%d, v3, s[16:19], s12 offen" % (4 + i))
        a("s_add_u32 s12, s12, %d" % (4096 if i < 6 else 2048))
    a("s_endpgm")
    a.label(L_rl)
    if nrl:
        a("s_cmp_ge_u32 s2, %d" % (256 + K3_NPF + nrl))
        a("s_cbranch_scc1 %s" % L_end)
        a("s_sub_u32 s14, s2, %d" % (256 + K3_NPF))
        a("s_lshl_b32 s14, s14, 3")
        a("s_add_u32 s14, s14, s3")
        a("s_waitcnt lgkmcnt(0)")
        rl(a, 3)
    a.label(L_end)
    a("s_endpgm")
    return name, 96, 100
```

```python
import math
from asmlib import *
from fft_kernels import *

WS_BYTES = 0x10000000
import os
RL_MODE = int(os.environ.get("RL_MODE", "0"))
K2_NEXTRA = {0: 180, 1: 0, 2: 60}[RL_MODE]
K1_NRL = 0 if RL_MODE == 0 else 60
K3_NRL = 30 if RL_MODE == 1 else 0


def transpose8x8(a, src, dst):
    for j in range(8):
        for p in range(4):
            lo = src + 4 * (2 * p) + j // 2
            hi = src + 4 * (2 * p + 1) + j // 2
            a("v_perm_b32 v%d, v%d, v%d, s%d" % (dst + 4 * j + p, hi, lo, 37 if j & 1 else 36))


def store_lines_via_lds(a, vaddr, sbase):
    a("s_mul_i32 s26, s3, 9216")
    a("v_mul_u32_u24 v72, 144, v1")
    a("v_add_u32 v72, s26, v72")
    for j in range(8):
        a("ds_write_b128 v72, v[%d:%d] offset:%d" % (40 + 4 * j, 43 + 4 * j, j * 16))
    a("v_lshrrev_b32 v73, 3, v1")
    a("v_mul_u32_u24 v74, 144, v73")
    a("v_and_b32 v75, 7, v1")
    a("v_lshl_add_u32 v74, v75, 4, v74")
    a("v_add_u32 v74, s26, v74")
    a("v_lshlrev_b32 v73, 2, v73")
    a("v_lshlrev_b32 v75, 4, v75")
    a("s_waitcnt lgkmcnt(0)")
    for m in range(8):
        a("ds_read_b128 v[%d:%d], v74 offset:%d" % (40 + 4 * m, 43 + 4 * m, m * 8 * 144))
        a("ds_bpermute_b32 v%d, v73, v%d offset:%d" % (8 + m, vaddr, m * 32))
    a("s_waitcnt lgkmcnt(0)")
    for m in range(8):
        a("v_add_u32 v%d, v%d, v75" % (8 + m, 8 + m))
    for m in range(8):
        a("buffer_store_dwordx4 v[%d:%d], v%d, s[28:31], s%d offen" % (40 + 4 * m, 43 + 4 * m, 8 + m, sbase))


def relayout_wgu(a, kidx):
    a("s_load_dwordx4 s[8:11], s[0:1], 32")
    a("s_mov_b32 s36, 0x05040100")
    a("s_mov_b32 s37, 0x07060302")
    L_up = a.newlabel("rl_up")
    L_go = a.newlabel("rl_go")
    a("s_mul_i32 s20, s14, 43691")
    a("s_lshr_b32 s20, s20, 17")
    a("s_mul_i32 s21, s20, 3")
    a("s_sub_u32 s21, s14, s21")
    a("s_and_b32 s15, s20, 1")
    a("s_lshr_b32 s20, s20, 1")
    a("s_waitcnt lgkmcnt(0)")
    a.srd(28, 6, WS_BYTES)
    a("s_cmp_eq_u32 s15, 1")
    a("s_cbranch_scc1 %s" % L_up)
    a.srd(16, 8, 640 * 1536 * 2)
    a("s_branch %s" % L_go)
    a.label(L_up)
    a.srd(16, 10, 640 * 1536 * 2)
    a.label(L_go)
    a("s_lshl_b32 s22, s21, 6")
    a("v_add_u32 v3, s22, v1")
    a("v_lshlrev_b32 v4, 4, v3")
    a("s_mul_i32 s22, s20, 24576")
    for r in range(8):
        a("s_add_u32 s24, s22, %d" % (r * 3072))
        a("buffer_load_dwordx4 v[%d:%d], v4, s[16:19], s24 offen" % (8 + 4 * r, 11 + 4 * r))
    a("v_lshrrev_b32 v5, 1, v3")
    a("v_mul_u32_u24 v5, 40960, v5")
    a("v_and_b32 v6, 1, v3")
    a("v_lshl_add_u32 v5, v6, 7, v5")
    a("s_lshr_b32 s22, s20, 1")
    a("s_lshl_b32 s22, s22, 10")
    a("s_and_b32 s23, s20, 1")
    a("s_lshl_b32 s23, s23, 9")
    a("s_add_u32 s22, s22, s23")
    a("s_lshl_b32 s23, s15, 8")
    a("s_add_u32 s22, s22, s23")
    a("s_add_u32 s22, s22, 0x%x" % WS_WGU)
    a("s_waitcnt vmcnt(0)")
    transpose8x8(a, 8, 40)
    store_lines_via_lds(a, 5, 22)
    a.rt_flush(kidx)
    a("s_endpgm")


def relayout_wdf(a, kidx):
    a("s_load_dwordx2 s[12:13], s[0:1], 48")
    a("s_mov_b32 s36, 0x05040100")
    a("s_mov_b32 s37, 0x07060302")
    a("s_lshl_b32 s14, s14, 6")
    a("v_add_u32 v3, s14, v1")
    a("s_mov_b32 s20, 52429")
    a("v_mul_lo_u32 v4, v3, s20")
    a("v_lshrrev_b32 v4, 22, v4")
    a("v_mul_u32_u24 v5, 80, v4")
    a("v_sub_u32 v5, v3, v5")
    a("v_mul_u32_u24 v6, 10240, v4")
    a("v_lshl_add_u32 v6, v5, 4, v6")
    a("s_waitcnt lgkmcnt(0)")
    a.srd(28, 6, WS_BYTES)
    a.srd(16, 12, 1536 * 640 * 2)
    for r in range(8):
        if r < 4:
            a("buffer_load_dwordx4 v[%d:%d], v6, s[16:19], 0 offen offset:%d" % (8 + 4 * r, 11 + 4 * r, r * 1280))
        else:
            if r == 4:
                a("s_movk_i32 s24, 5120")
            a("buffer_load_dwordx4 v[%d:%d], v6, s[16:19], s24 offen offset:%d" % (8 + 4 * r, 11 + 4 * r, (r - 4) * 1280))
    a("v_lshrrev_b32 v7, 1, v5")
    a("v_mul_u32_u24 v7, 49152, v7")
    a("v_lshrrev_b32 v3, 2, v4")
    a("v_lshl_add_u32 v7, v3, 10, v7")
    a("v_and_b32 v3, 3, v4")
    a("v_lshl_add_u32 v7, v3, 8, v7")
    a("v_and_b32 v3, 1, v5")
    a("v_lshl_add_u32 v7, v3, 7, v7")
    a("s_mov_b32 s22, 0x%x" % WS_WDF)
    a("s_waitcnt vmcnt(0)")
    transpose8x8(a, 8, 40)
    store_lines_via_lds(a, 7, 22)
    a.rt_flush(kidx)
    a("s_endpgm")


def relayout_path(a, L_end):
    if K2_NEXTRA == 0:
        return
    L_wd = a.newlabel("rl_wd")
    a("s_cmp_ge_u32 s2, %d" % (321 + K2_NEXTRA))
    a("s_cbranch_scc1 %s" % L_end)
    a("v_and_b32 v1, 63, v0")
    a("v_lshrrev_b32 v2, 6, v0")
    a("s_nop 0")
    a("v_readfirstlane_b32 s3, v2")
    a("s_sub_u32 s14, s2, 321")
    a("s_lshl_b32 s14, s14, 2")
    a("s_add_u32 s14, s14, s3")
    if RL_MODE == 0:
        a("s_cmp_ge_u32 s14, 480")
        a("s_cbranch_scc1 %s" % L_wd)
        relayout_wgu(a, 2)
        a.label(L_wd)
        a("s_sub_u32 s14, s14, 480")
    relayout_wdf(a, 2)


K4_SLOT = 20480
K4_NS = 6
K4_PREFETCH = False
K4_LDS = K4_NS * K4_SLOT


def gelu_epilogue_tile(a, acc, T):
    G = [T + 2 * p for p in range(4)]
    U = [T + 8 + 2 * p for p in range(4)]
    Z = [T + 16 + 2 * p for p in range(4)]
    for p in range(4):
        a("v_cvt_pk_bf16_f32 v%d, v%d, v%d" % (G[p] + 1, acc + 2 * p, acc + 2 * p + 1))
    for p in range(4):
        a("v_cvt_pk_bf16_f32 v%d, v%d, v%d" % (U[p] + 1, acc + 8 + 2 * p, acc + 9 + 2 * p))
    for p in range(4):
        a("v_lshlrev_b32 v%d, 16, v%d" % (G[p], G[p] + 1))
        a("v_and_b32 v%d, 0xffff0000, v%d" % (G[p] + 1, G[p] + 1))
    for p in range(4):
        a("v_pk_mul_f32 %s, %s, %s" % (a.P(Z[p]), a.P(G[p]), a.P(G[p])))
    for p in range(4):
        a("v_pk_fma_f32 %s, %s, s[40:41], %s" % (a.P(Z[p]), a.P(Z[p]), a.P(T + 24)))
    for p in range(4):
        a("v_pk_mul_f32 %s, %s, %s" % (a.P(Z[p]), a.P(Z[p]), a.P(G[p])))
    for p in range(4):
        a("v_exp_f32 v%d, v%d" % (Z[p], Z[p]))
        a("v_exp_f32 v%d, v%d" % (Z[p] + 1, Z[p] + 1))
    for p in range(4):
        a("v_lshlrev_b32 v%d, 16, v%d" % (U[p], U[p] + 1))
        a("v_and_b32 v%d, 0xffff0000, v%d" % (U[p] + 1, U[p] + 1))
    for p in range(4):
        a("v_pk_add_f32 %s, %s, s[44:45]" % (a.P(Z[p]), a.P(Z[p])))
    for p in range(4):
        a("v_rcp_f32 v%d, v%d" % (Z[p], Z[p]))
        a("v_rcp_f32 v%d, v%d" % (Z[p] + 1, Z[p] + 1))
    a("s_nop 0")
    for p in range(4):
        a("v_pk_mul_f32 %s, %s, %s" % (a.P(Z[p]), a.P(Z[p]), a.P(G[p])))
    for p in range(4):
        a("v_cvt_pk_bf16_f32 v%d, v%d, v%d" % (Z[p] + 1, Z[p], Z[p] + 1))
    for p in range(4):
        a("v_lshlrev_b32 v%d, 16, v%d" % (Z[p], Z[p] + 1))
        a("v_and_b32 v%d, 0xffff0000, v%d" % (Z[p] + 1, Z[p] + 1))
    for p in range(4):
        a("v_pk_mul_f32 %s, %s, %s" % (a.P(Z[p]), a.P(Z[p]), a.P(U[p])))
    for p in range(4):
        a("v_cvt_pk_bf16_f32 v%d, v%d, v%d" % (acc + p, Z[p], Z[p] + 1))


def gen_k4(a):
    name = "k4_kernel"
    kernel_header(a, name)
    L_end = a.newlabel("k4end")
    a("s_cmp_ge_u32 s2, 256")
    a("s_cbranch_scc1 %s" % L_end)
    a("s_load_dwordx2 s[6:7], s[0:1], 72")
    a("v_and_b32 v1, 63, v0")
    a("v_lshrrev_b32 v2, 6, v0")
    a("s_nop 0")
    a("v_readfirstlane_b32 s3, v2")
    a("s_and_b32 s13, s2, 7")
    a("s_lshr_b32 s14, s2, 3")
    a("s_and_b32 s8, s13, 1")
    a("s_lshl_b32 s8, s8, 3")
    a("s_and_b32 s15, s14, 7")
    a("s_add_u32 s8, s8, s15")
    a("s_lshr_b32 s9, s13, 1")
    a("s_lshl_b32 s9, s9, 2")
    a("s_lshr_b32 s15, s14, 3")
    a("s_add_u32 s9, s9, s15")
    a("s_bfe_u32 s10, s3, 0x10001")
    a("s_and_b32 s11, s3, 1")
    a("s_lshr_b32 s30, s3, 2")
    a("v_lshlrev_b32 v3, 4, v1")
    a("s_lshr_b32 s13, s3, 1")
    a("s_and_b32 s14, s3, 1")
    a("s_lshl_b32 s14, s14, 10")
    a("s_lshl_b32 s15, s9, 2")
    a("s_add_u32 s15, s15, s13")
    a("s_mul_i32 s20, s15, 40960")
    a("s_add_u32 s20, s20, s14")
    a("s_add_u32 s20, s20, 0x%x" % WS_LN2F)
    a("s_mul_i32 s15, s8, 6")
    a("s_add_u32 s15, s15, s13")
    a("s_mul_i32 s21, s15, 40960")
    a("s_add_u32 s21, s21, s14")
    a("s_add_u32 s21, s21, 0x%x" % WS_WGU)
    a("s_add_u32 s22, s21, %d" % (4 * 40960))
    a("s_lshl_b32 s12, s3, 10")
    a("s_lshl_b32 s13, s10, 12")
    a("s_lshl_b32 s14, s30, 10")
    a("s_add_u32 s13, s13, s14")
    a("v_add_u32 v5, s13, v3")
    a("v_add_u32 v6, %d, v5" % (3 * K4_SLOT))
    a("s_mul_i32 s13, s11, 6144")
    a("s_add_u32 s13, s13, 8192")
    a("s_add_u32 s13, s13, s14")
    a("v_add_u32 v8, s13, v3")
    a("v_add_u32 v9, %d, v8" % (3 * K4_SLOT))
    a("v_lshlrev_b32 v14, 6, v1")
    a("s_and_b32 s31, s2, 1")
    a("s_mul_i32 s31, s31, %d" % (20 * 49152))
    a("s_lshr_b32 s13, s2, 3")
    a("s_mul_i32 s13, s13, 30720")
    a("s_add_u32 s31, s31, s13")
    a("s_lshl_b32 s13, s3, 12")
    a("s_add_u32 s31, s31, s13")
    a("s_add_u32 s31, s31, 0x%x" % WS_WDF)
    a("s_waitcnt lgkmcnt(0)")
    a.srd(16, 6, WS_BYTES)
    a.stamp_init()
    a.stamp()
    ACC = 64
    FR = [[16 + 20 * s + 4 * i for i in range(5)] for s in range(2)]
    NST = 20
    D = K4_NS - 1
    L_g1 = a.newlabel("k4g1")
    L_join = a.newlabel("k4join")
    a("s_cmp_eq_u32 s30, 1")
    a("s_cbranch_scc1 %s" % L_g1)
    for g in range(2):
        nd = 3 if g == 0 else 2

        def dma_list(stage):
            slot = stage % K4_NS
            out = []
            for c in range(nd):
                out.append(["s_add_u32 m0, s12, %d" % (slot * K4_SLOT + c * 8192),
                            "s_nop 0",
                            "buffer_load_dwordx4 v3, s[16:19], s%d offen lds" % (20 + c),
                            "s_add_u32 s%d, s%d, 2048" % (20 + c, 20 + c)])
            return out

        def read_list(stage, st):
            slot = stage % K4_NS
            f = FR[st]
            hi = slot // 3
            so = (slot % 3) * K4_SLOT
            out = []
            for i in range(2):
                out.append("ds_read_b128 v[%d:%d], v%d offset:%d" % (f[i], f[i] + 3, 5 + hi, so + i * 2048))
            for i in range(3):
                out.append("ds_read_b128 v[%d:%d], v%d offset:%d" % (f[2 + i], f[2 + i] + 3, 8 + hi, so + i * 2048))
            return out

        def mfma_list(st, first):
            f = FR[st]
            out = []
            for i in range(2):
                for j in range(3):
                    acc = ACC + 16 * (i * 3 + j)
                    c = "0" if first else "v[%d:%d]" % (acc, acc + 15)
                    out.append("v_mfma_f32_32x32x16_bf16 v[%d:%d], v[%d:%d], v[%d:%d], %s"
                               % (acc, acc + 15, f[2 + j], f[2 + j] + 3, f[i], f[i] + 3, c))
            return out

        for s in range(D):
            for d in dma_list(s):
                for x in d:
                    a(x)
        NPF = 0
        a("s_waitcnt vmcnt(%d)" % (nd * (D - 1) + NPF))
        a("s_barrier")
        if g == 0:
            a.stamp()
        for x in read_list(0, 0):
            a(x)
        for s in range(NST):
            issued = min(s + D - 1, NST - 1)
            mf = mfma_list(s & 1, s == 0)
            fill = [[] for _ in range(6)]
            if s + 1 < NST:
                a("s_waitcnt vmcnt(%d) lgkmcnt(0)" % (nd * (issued - (s + 1)) + (1 if s > 15 else 0)))
                a("s_barrier")
                rl = read_list(s + 1, (s + 1) & 1)
                fill[0] = rl[0:2]
                fill[1] = rl[2:4]
                fill[2] = rl[4:5]
                if s + D < NST:
                    dl = dma_list(s + D)
                    for i, d in enumerate(dl):
                        fill[2 + i] = fill[2 + i] + d
            else:
                a("s_waitcnt lgkmcnt(0)")
            if s == 15:
                fill[3] = fill[3] + ["buffer_load_dword v160, v14, s[16:19], s31 offen"]
            for i in range(6):
                a(mf[i])
                for x in fill[i]:
                    a(x)
            if g == 0 and s in (1, 10):
                a.stamp()
        if g == 0:
            a("s_branch %s" % L_join)
            a.label(L_g1)
            if a.stamps_on:
                a.nst -= 3
    a.label(L_join)
    if a.stamps_on:
        a.nst += 3
    a("s_barrier")
    a("s_nop 7")
    a.stamp()
    a("s_mul_i32 s13, s3, 12288")
    a("v_add_u32 v10, s13, v3")
    a("s_xor_b32 s13, s3, 4")
    a("s_mul_i32 s13, s13, 12288")
    a("v_add_u32 v11, s13, v3")
    L_x1 = a.newlabel("k4x1")
    L_x2 = a.newlabel("k4x2")
    a("s_cmp_eq_u32 s30, 1")
    a("s_cbranch_scc1 %s" % L_x1)
    for q in range(12):
        a("ds_write_b128 v10, v[%d:%d] offset:%d" % (ACC + 48 + 4 * q, ACC + 51 + 4 * q, q * 1024))
    a("s_branch %s" % L_x2)
    a.label(L_x1)
    for q in range(12):
        a("ds_write_b128 v10, v[%d:%d] offset:%d" % (ACC + 4 * q, ACC + 3 + 4 * q, q * 1024))
    a("s_nop 1")
    for r in range(0, 48, 2):
        a("v_pk_mov_b32 v[%d:%d], v[%d:%d], v[%d:%d] op_sel:[0,1]" % (ACC + r, ACC + r + 1, ACC + 48 + r, ACC + 49 + r, ACC + 48 + r, ACC + 49 + r))
    a.label(L_x2)
    a("s_waitcnt lgkmcnt(0)")
    a.stamp()
    a("s_barrier")
    a.stamp()
    for q in range(12):
        a("ds_read_b128 v[%d:%d], v11 offset:%d" % (ACC + 48 + 4 * q, ACC + 51 + 4 * q, q * 1024))
    a("v_bfe_u32 v12, v1, 4, 1")
    a("v_mul_u32_u24 v12, 49152, v12")
    a("v_and_b32 v13, 15, v1")
    a("v_lshl_add_u32 v12, v13, 4, v12")
    a("v_lshrrev_b32 v13, 5, v1")
    a("v_lshl_add_u32 v12, v13, 3, v12")
    a("s_lshl_b32 s13, s9, 2")
    a("s_lshl_b32 s14, s10, 1")
    a("s_add_u32 s13, s13, s14")
    a("s_add_u32 s13, s13, s30")
    a("s_mul_i32 s13, s13, 98304")
    a("s_add_u32 s13, s13, 0x%x" % WS_ACTF)
    a("s_mul_i32 s14, s8, 6")
    a("s_mul_i32 s15, s11, 3")
    a("s_add_u32 s14, s14, s15")
    a("s_lshl_b32 s14, s14, 9")
    a("s_add_u32 s13, s13, s14")
    k = -2.0 * math.sqrt(2.0 / math.pi) * math.log2(math.e)
    a("s_mov_b32 s40, %s" % f32hex(0.044715 * k))
    a("s_mov_b32 s41, %s" % f32hex(0.044715 * k))
    a("v_mov_b32 v40, %s" % f32hex(k))
    a("v_mov_b32 v41, %s" % f32hex(k))
    a("s_mov_b32 s44, 1.0")
    a("s_mov_b32 s45, 1.0")
    for j in range(3):
        acc = ACC + 16 * j
        a("s_waitcnt lgkmcnt(%d)" % (8 - 4 * j))
        for r in range(0, 16, 2):
            a.cadd(acc + r, acc + r, acc + 48 + r)
        gelu_epilogue_tile(a, acc, 16)
        a.stamp()
        a("buffer_store_dwordx2 v[%d:%d], v12, s[16:19], s13 offen offset:%d" % (acc, acc + 1, j * 512))
        a("buffer_store_dwordx2 v[%d:%d], v12, s[16:19], s13 offen offset:%d" % (acc + 2, acc + 3, j * 512 + 256))
    a.stamp()
    a.stamp_flush(4, 3)
    a.label(L_end)
    a("s_endpgm")
    return name, 164, 100


K5_LDS = 4 * 20 * 1024
K5_DEPTH = 6
import os
K5_XCDMAP = os.environ.get("K5_XCDMAP", "1") == "1"


def gen_k5(a):
    name = "k5_kernel"
    kernel_header(a, name)
    L_end = a.newlabel("k5end")
    a("s_cmp_ge_u32 s2, 256")
    a("s_cbranch_scc1 %s" % L_end)
    a("s_load_dwordx2 s[6:7], s[0:1], 72")
    a("s_load_dwordx2 s[4:5], s[0:1], 56")
    a("v_and_b32 v1, 63, v0")
    a("v_lshrrev_b32 v2, 6, v0")
    a("s_nop 0")
    a("v_readfirstlane_b32 s3, v2")
    if K5_XCDMAP:
        a("s_and_b32 s13, s2, 7")
        a("s_lshr_b32 s14, s2, 3")
        a("s_and_b32 s8, s13, 1")
        a("s_lshl_b32 s8, s8, 2")
        a("s_and_b32 s15, s14, 3")
        a("s_add_u32 s8, s8, s15")
        a("s_lshr_b32 s9, s13, 1")
        a("s_lshl_b32 s9, s9, 3")
        a("s_lshr_b32 s15, s14, 2")
        a("s_add_u32 s9, s9, s15")
    else:
        a("s_and_b32 s8, s2, 7")
        a("s_lshr_b32 s9, s2, 3")
    a("v_lshlrev_b32 v3, 4, v1")
    a("s_mul_i32 s12, s3, 12288")
    a("s_mul_i32 s13, s9, %d" % (4 * 49152))
    a("s_add_u32 s13, s13, s12")
    a("s_add_u32 s13, s13, 0x%x" % WS_ACTF)
    for i in range(4):
        a("s_add_u32 s%d, s13, %d" % (20 + i, i * 49152))
    a("s_mul_i32 s13, s8, %d" % (5 * 49152))
    a("s_add_u32 s13, s13, s12")
    a("s_add_u32 s13, s13, 0x%x" % WS_WDF)
    for j in range(5):
        a("s_add_u32 s%d, s13, %d" % (24 + j, j * 49152))
    a("s_waitcnt lgkmcnt(0)")
    a.srd(16, 6, WS_BYTES)
    a.srd(32, 4, X_BYTES)
    a.stamp_init()
    a.stamp()
    D = K5_DEPTH
    FB = 16

    def loads(step):
        slot = step % D
        if step and step % 4 == 0:
            for i in range(9):
                a("s_add_u32 s%d, s%d, 4096" % (20 + i, 20 + i))
        for i in range(9):
            r = FB + 36 * slot + 4 * i
            a("buffer_load_dwordx4 v[%d:%d], v3, s[16:19], s%d offen offset:%d" % (r, r + 3, 20 + i, (step % 4) * 1024))

    a("v_and_b32 v4, 15, v1")
    a("v_mul_u32_u24 v4, 1280, v4")
    a("v_lshrrev_b32 v5, 4, v1")
    a("v_lshl_add_u32 v4, v5, 3, v4")
    a("s_lshl_b32 s13, s9, 2")
    a("s_add_u32 s13, s13, s3")
    a("s_mul_i32 s13, s13, 20480")
    a("s_mul_i32 s14, s8, 160")
    a("s_add_u32 s13, s13, s14")
    a("s_add_u32 s14, s13, 0x%x" % WS_H)
    for j in range(5):
        a("buffer_load_dwordx2 v[%d:%d], v4, s[16:19], s14 offen offset:%d" % (6 + 2 * j, 7 + 2 * j, j * 32))
    for s in range(D):
        loads(s)
    for s in range(12):
        rem = min(12, s + D) - (s + 1)
        a("s_waitcnt vmcnt(%d)" % (9 * rem))
        if s in (0, 1, 6, 11):
            a.stamp()
        slot = s % D
        for i in range(4):
            for j in range(5):
                acc = 4 * (i * 5 + j)
                ra = FB + 36 * slot + 4 * (4 + j)
                rb = FB + 36 * slot + 4 * i
                c = "0" if s == 0 else "a[%d:%d]" % (acc, acc + 3)
                a("v_mfma_f32_16x16x32_bf16 a[%d:%d], v[%d:%d], v[%d:%d], %s" % (acc, acc + 3, ra, ra + 3, rb, rb + 3, c))
        if s + D < 12:
            loads(s + D)
    a("s_nop 7")
    a.stamp()
    a("s_mul_i32 s15, s3, 20480")
    a("v_add_u32 v5, s15, v3")
    L_skip = []
    for i in range(4):
        lab = a.newlabel("k5sk")
        a("s_cmp_eq_u32 s3, %d" % i)
        a("s_cbranch_scc1 %s" % lab)
        for j in range(5):
            t = i * 5 + j
            a("ds_write_b128 v5, a[%d:%d] offset:%d" % (4 * t, 4 * t + 3, t * 1024))
        a.label(lab)
    L_done = a.newlabel("k5own")
    for i in range(4):
        lab = a.newlabel("k5o")
        a("s_cmp_lg_u32 s3, %d" % i)
        a("s_cbranch_scc1 %s" % lab)
        for r in range(20):
            a("v_accvgpr_read_b32 v%d, a%d" % (16 + r, 20 * i + r))
        a("s_branch %s" % L_done)
        a.label(lab)
    a.label(L_done)
    a("s_waitcnt lgkmcnt(0)")
    a("s_barrier")
    a("s_mul_i32 s15, s3, 5120")
    a("v_add_u32 v5, s15, v3")
    for o in range(1, 4):
        a("s_add_u32 s22, s3, %d" % o)
        a("s_and_b32 s22, s22, 3")
        a("s_mul_i32 s22, s22, 20480")
        a("v_add_u32 v%d, s22, v5" % (36 + o))
    for o in range(1, 4):
        for j in range(5):
            r = 40 + 20 * (o - 1) + 4 * j
            a("ds_read_b128 v[%d:%d], v%d offset:%d" % (r, r + 3, 36 + o, j * 1024))
    a("s_waitcnt lgkmcnt(0)")
    for o in range(1, 4):
        for q in range(10):
            a.cadd(16 + 2 * q, 16 + 2 * q, 40 + 20 * (o - 1) + 2 * q)
    a("s_waitcnt vmcnt(0)")
    for j in range(5):
        for p in range(2):
            d = 16 + 4 * j + 2 * p
            h = 6 + 2 * j + p
            a("v_cvt_pk_bf16_f32 v%d, v%d, v%d" % (d + 1, d, d + 1))
            a("v_lshlrev_b32 v%d, 16, v%d" % (d, d + 1))
            a("v_and_b32 v%d, 0xffff0000, v%d" % (d + 1, d + 1))
            a("v_lshlrev_b32 v40, 16, v%d" % h)
            a("v_and_b32 v41, 0xffff0000, v%d" % h)
            a.cadd(d, d, 40)
            a("v_cvt_pk_bf16_f32 v%d, v%d, v%d" % (h, d, d + 1))
        a("buffer_store_dwordx2 v[%d:%d], v4, s[32:35], s13 offen offset:%d" % (6 + 2 * j, 7 + 2 * j, j * 32))
    a.stamp()
    a.stamp_flush(5, 3)
    a.label(L_end)
    a("s_endpgm")
    return name, FB + 36 * D, 100, 80
```

```python
import sys, os
from asmlib import *
from fft_kernels import *
from gemm_kernels import *

def main(out):
    a = Asm()
    a.stamps_on = len(sys.argv) > 2 and sys.argv[2] == "stamp"
    a.raw("; @launch kernel=k1_kernel grid=(%d,1,1) block=(512,1,1) lds=%d" % (256 + K1_NWT + K1_NRL, K13_LDS))
    a.raw("; @launch kernel=k2_kernel grid=(%d,1,1) block=(256,1,1) lds=%d" % (321 + K2_NEXTRA, K2_LDS))
    a.raw("; @launch kernel=k3_kernel grid=(%d,1,1) block=(512,1,1) lds=%d" % (256 + K3_NPF + K3_NRL, K13_LDS))
    a.raw("; @launch kernel=k4_kernel grid=(256,1,1) block=(512,1,1) lds=%d" % K4_LDS)
    a.raw("; @launch kernel=k5_kernel grid=(256,1,1) block=(256,1,1) lds=%d" % K5_LDS)
    a.raw('.amdgcn_target "amdgcn-amd-amdhsa--gfx950"')
    a.raw(".text")
    ks = []
    ks.append(gen_k1(a, relayout_wgu, K1_NRL))
    ks.append(gen_k2(a, relayout_path, K2_NEXTRA))
    ks.append(gen_k3(a, relayout_wdf, K3_NRL))
    ks.append(gen_k4b(a) if os.environ.get("K4B", "0") == "1" else gen_k4(a))
    ks.append(gen_k5(a))
    a.raw('.section .rodata,"a"')
    for k in ks:
        if len(k) == 3:
            kernel_desc(a, k[0], k[1], k[2])
        else:
            kernel_desc(a, k[0], k[1], k[2], agpr=k[3])
    open(out, "w").write(a.text())

main(sys.argv[1] if len(sys.argv) > 1 else "sequential_preLN__spectral_gfnet__geglu_ffn__prompt.s")
```

```python
import math
from asmlib import *

WS_ZT = 0x0000000
WS_YT = 0x0600000
WS_WT = 0x0C00000
WS_H = 0x1000000
WS_LN2F = 0x1400000
WS_WGU = 0x1800000
WS_WDF = 0x1C00000
WS_ACTF = 0x2000000
ZT_BYTES = 321 * 2048 * 8
WT_BYTES = 321 * 2048 * 4
X_BYTES = 2048 * 640 * 2
WF_BYTES = 2048 * 321 * 2

WSCR = 2880
TBASE = 8 * WSCR
K13_LDS = TBASE + 384 * 80

K3_NPF = int(__import__("os").environ.get("K3_NPF","0"))
K1_NWT = 96


def emit_layernorm(a, X, vt, s_tmp, s_inv640):
    t0 = vt
    a.cadd(t0, X[0], X[1])
    a.cadd(t0 + 2, X[2], X[3])
    a.cadd(t0, t0, X[4])
    a.cadd(t0, t0, t0 + 2)
    a("v_add_f32 v%d, v%d, v%d" % (t0, t0, t0 + 1))
    a.wave_sum(t0, s_tmp)
    a("v_mov_b32 v%d, s%d" % (t0 + 6, s_inv640))
    a("v_mul_f32 v%d, s%d, v%d" % (t0 + 6, s_tmp, t0 + 6))
    a("v_mov_b32 v%d, v%d" % (t0 + 7, t0 + 6))
    for j in range(5):
        a.csub(t0 + 2, X[j], t0 + 6)
        if j == 0:
            a("v_pk_mul_f32 %s, %s, %s" % (a.P(t0), a.P(t0 + 2), a.P(t0 + 2)))
        else:
            a("v_pk_fma_f32 %s, %s, %s, %s" % (a.P(t0), a.P(t0 + 2), a.P(t0 + 2), a.P(t0)))
    a("v_add_f32 v%d, v%d, v%d" % (t0, t0, t0 + 1))
    a.wave_sum(t0, s_tmp)
    a("v_mov_b32 v%d, s%d" % (t0 + 4, s_inv640))
    a("v_mul_f32 v%d, s%d, v%d" % (t0 + 4, s_tmp, t0 + 4))
    a("v_cvt_pk_bf16_f32 v%d, v%d, v%d" % (t0 + 4, t0 + 4, t0 + 6))
    a("v_and_b32 v%d, 0xffff0000, v%d" % (t0 + 6, t0 + 4))
    a("v_mov_b32 v%d, v%d" % (t0 + 7, t0 + 6))
    a("v_lshlrev_b32 v%d, 16, v%d" % (t0 + 4, t0 + 4))
    a("v_add_f32 v%d, %s, v%d" % (t0 + 4, f32hex(1e-5), t0 + 4))
    a("v_cvt_pk_bf16_f32 v%d, v%d, v%d" % (t0 + 4, t0 + 4, t0 + 4))
    a("v_lshlrev_b32 v%d, 16, v%d" % (t0 + 4, t0 + 4))
    a("v_sqrt_f32 v%d, v%d" % (t0 + 4, t0 + 4))
    a("s_nop 0")
    a("v_cvt_pk_bf16_f32 v%d, v%d, v%d" % (t0 + 4, t0 + 4, t0 + 4))
    a("v_lshlrev_b32 v%d, 16, v%d" % (t0 + 4, t0 + 4))
    a("v_rcp_f32 v%d, v%d" % (t0 + 5, t0 + 4))
    a("s_nop 0")
    a("v_fma_f32 v%d, -v%d, v%d, 2.0" % (t0 + 4, t0 + 4, t0 + 5))
    a("v_mul_f32 v%d, v%d, v%d" % (t0 + 4, t0 + 4, t0 + 5))
    a("v_mov_b32 v%d, v%d" % (t0 + 5, t0 + 4))
    for j in range(5):
        x = X[j]
        a.csub(x, x, t0 + 6)
        a("v_cvt_pk_bf16_f32 v%d, v%d, v%d" % (x + 1, x, x + 1))
        a("v_lshlrev_b32 v%d, 16, v%d" % (x, x + 1))
        a("v_and_b32 v%d, 0xffff0000, v%d" % (x + 1, x + 1))
        a("v_pk_mul_f32 %s, %s, %s" % (a.P(x), a.P(x), a.P(t0 + 4)))
        a("v_cvt_pk_bf16_f32 v%d, v%d, v%d" % (t0 + 8 + j, x, x + 1))
        a("v_lshlrev_b32 v%d, 16, v%d" % (x, t0 + 8 + j))
        a("v_and_b32 v%d, 0xffff0000, v%d" % (x + 1, t0 + 8 + j))
    return [t0 + 8 + j for j in range(5)]


def fft_consts(a, s0):
    c = {}
    names = [("r2", 1 / math.sqrt(2)), ("c1", math.cos(2 * math.pi / 5)), ("c2", math.cos(4 * math.pi / 5)),
             ("s1", math.sin(2 * math.pi / 5)), ("s2", math.sin(4 * math.pi / 5))]
    for i, (n, v) in enumerate(names):
        c[n] = s0 + 2 * i
        a.sconst_pair(s0 + 2 * i, v)
    return c


def gen_k1(a, rl=None, nrl=0):
    name = "k1_kernel"
    kernel_header(a, name)
    L_wt = a.newlabel("k1wt")
    L_end = a.newlabel("k1end")
    a("s_load_dwordx2 s[4:5], s[0:1], 0")
    a("s_load_dwordx4 s[8:11], s[0:1], 8")
    a("s_load_dwordx2 s[6:7], s[0:1], 72")
    a("v_and_b32 v1, 63, v0")
    a("v_lshrrev_b32 v2, 6, v0")
    a("s_nop 0")
    a("v_readfirstlane_b32 s3, v2")
    a("s_cmp_ge_u32 s2, 256")
    a("s_cbranch_scc1 %s" % L_wt)
    C = fft_consts(a, 40)
    a("s_mov_b32 s50, %s" % f32hex(1.0 / 640))
    a("s_and_b32 s12, s2, 7")
    a("s_lshl_b32 s12, s12, 5")
    a("s_lshr_b32 s13, s2, 3")
    a("s_add_u32 s51, s12, s13")
    a("s_lshl_b32 s12, s51, 3")
    a("s_add_u32 s12, s12, s3")
    a("s_mul_i32 s13, s12, 1280")
    a("v_lshlrev_b32 v3, 2, v1")
    a("s_waitcnt lgkmcnt(0)")
    a.srd(16, 4, X_BYTES)
    a.srd_off(20, 6, WS_ZT, ZT_BYTES)
    a.stamp_init()
    a.stamp()
    for j in range(5):
        a("buffer_load_dword v%d, v3, s[16:19], s13 offen offset:%d" % (5 + j, j * 256))
    W1 = [None, 40, 42, 44, 46]
    a("v_cvt_f32_u32 v4, v1")
    a("v_mul_f32 v10, %s, v4" % f32hex(-1.0 / 320))
    a.sincos_pair(40, 10)
    a("s_nop 0")
    a.twiddle_powers(W1, 4, 12)
    W2 = [None] + [48 + 2 * i for i in range(7)]
    a("v_and_b32 v10, 7, v1")
    a("v_cvt_f32_u32 v10, v10")
    a("v_mul_f32 v10, %s, v10" % f32hex(-1.0 / 64))
    a.sincos_pair(48, 10)
    a("s_nop 0")
    a.twiddle_powers(W2, 7, 12)
    W3 = [62 + 2 * j for j in range(5)]
    for j in range(5):
        a("v_mov_b32 v10, %s" % f32hex(64.0 * j / 640 + 0.5))
        a("v_fmac_f32 v10, %s, v4" % f32hex(1.0 / 640))
        a("v_sin_f32 v%d, v10" % W3[j])
        a("v_cos_f32 v%d, v10" % (W3[j] + 1))
    a("s_mul_i32 s14, s3, %d" % WSCR)
    a("v_lshlrev_b32 v72, 3, v1")
    a("v_add_u32 v72, s14, v72")
    a("v_lshrrev_b32 v73, 3, v1")
    a("v_mul_u32_u24 v74, 576, v73")
    a("v_and_b32 v75, 7, v1")
    a("v_lshlrev_b32 v76, 3, v75")
    a("v_add3_u32 v76, v74, v76, s14")
    a("v_mul_u32_u24 v77, 72, v75")
    a("v_add3_u32 v77, v74, v77, s14")
    a("v_mul_u32_u24 v78, 5, v75")
    a("v_add_u32 v78, v78, v73")
    a("v_lshlrev_b32 v78, 3, v78")
    a("v_add_u32 v78, s14, v78")
    a("v_sub_u32 v79, 320, v1")
    a("v_lshlrev_b32 v79, 3, v79")
    a("v_add_u32 v79, s14, v79")
    a("v_mul_u32_u24 v80, 80, v1")
    a("s_lshl_b32 s15, s3, 3")
    a("s_add_u32 s15, s15, %d" % TBASE)
    a("v_add_u32 v80, s15, v80")
    X = [14, 16, 18, 20, 22]
    a.stamp()
    a("s_waitcnt vmcnt(0)")
    a.stamp()
    for j in range(5):
        a("v_lshlrev_b32 v%d, 16, v%d" % (X[j], 5 + j))
        a("v_and_b32 v%d, 0xffff0000, v%d" % (X[j] + 1, 5 + j))
    emit_layernorm(a, X, 24, 38, 50)
    a.stamp()
    pool = [24, 26, 28, 30, 32, 34, 36, 38]
    A = a.radix5(X, pool, -1, C["c1"], C["c2"], C["s1"], C["s2"])
    t = pool.pop()
    for k1 in range(1, 5):
        a.cmul(A[k1], A[k1], W1[k1], t)
    pool.append(t)
    for k1 in range(5):
        a("ds_write_b64 v72, %s offset:%d" % (a.P(A[k1]), k1 * 576))
    pool += A
    a("s_waitcnt lgkmcnt(0)")
    B = [pool.pop() for _ in range(8)]
    for m1 in range(8):
        a("ds_read_b64 %s, v76 offset:%d" % (a.P(B[m1]), m1 * 64))
    a("s_waitcnt lgkmcnt(0)")
    B = a.radix8(B, pool, -1, C["r2"])
    t = pool.pop()
    for q1 in range(1, 8):
        a.cmul(B[q1], B[q1], W2[q1], t)
    pool.append(t)
    a("v_cmp_gt_u32 vcc, 40, v1")
    a("s_and_saveexec_b64 s[32:33], vcc")
    for q1 in range(8):
        a("ds_write_b64 v76, %s offset:%d" % (a.P(B[q1]), q1 * 72))
    a("s_mov_b64 exec, s[32:33]")
    pool += B
    a("s_waitcnt lgkmcnt(0)")
    B = [pool.pop() for _ in range(8)]
    for m2 in range(8):
        a("ds_read_b64 %s, v77 offset:%d" % (a.P(B[m2]), m2 * 8))
    a("s_waitcnt lgkmcnt(0)")
    B = a.radix8(B, pool, -1, C["r2"])
    a("s_mov_b64 exec, vcc")
    for q2 in range(8):
        a("ds_write_b64 v78, %s offset:%d" % (a.P(B[q2]), q2 * 320))
    a("s_mov_b64 exec, 1")
    a("ds_write_b64 v78, %s offset:%d" % (a.P(B[0]), 320 * 8))
    a("s_mov_b64 exec, s[32:33]")
    pool += B
    a("s_waitcnt lgkmcnt(0)")
    Zk = [pool.pop() for _ in range(5)]
    Zm = [pool.pop() for _ in range(5)]
    a("v_subrev_u32 v81, 2048, v79")
    for j in range(5):
        a("ds_read_b64 %s, v72 offset:%d" % (a.P(Zk[j]), j * 512))
        a("ds_read_b64 %s, v81 offset:%d" % (a.P(Zm[j]), 2048 - j * 512))
    a("s_waitcnt lgkmcnt(0)")
    S = pool.pop()
    t = pool.pop()
    for j in range(5):
        zk, zm = Zk[j], Zm[j]
        a("v_pk_add_f32 %s, %s, %s neg_hi:[0,1]" % (a.P(S), a.P(zk), a.P(zm)))
        a("v_pk_add_f32 %s, %s, %s neg_lo:[0,1]" % (a.P(zk), a.P(zk), a.P(zm)))
        if j == 0:
            a("v_sub_f32 v%d, v%d, v%d" % (zm, S, zk + 1))
            a("v_mov_b32 v%d, 0" % (zm + 1))
        a.cmul_acc(zk, zk, W3[j], S, t)
        a("ds_write_b64 v80, %s offset:%d" % (a.P(zk), j * 64 * 80))
        if j == 0:
            a("s_mov_b64 exec, 1")
            a("ds_write_b64 v80, %s offset:%d" % (a.P(zm), 320 * 80))
            a("s_mov_b64 exec, s[32:33]")
    a("s_waitcnt lgkmcnt(0)")
    a.stamp()
    a("s_barrier")
    a.stamp()
    a("v_lshrrev_b32 v4, 2, v0")
    a("v_and_b32 v5, 3, v0")
    a("v_mul_u32_u24 v6, 80, v4")
    a("v_lshlrev_b32 v5, 4, v5")
    a("v_add3_u32 v6, v6, v5, %d" % 0)
    a("v_add_u32 v6, %d, v6" % TBASE)
    a("v_lshlrev_b32 v7, 14, v4")
    a("v_add_u32 v7, v7, v5")
    a("s_lshl_b32 s13, s51, 6")
    for r in range(3):
        a("ds_read_b128 v[%d:%d], v6 offset:%d" % (8 + 4 * r, 11 + 4 * r, r * 128 * 80))
    a("s_add_u32 s24, s13, %d" % (128 * 16384))
    a("s_add_u32 s25, s13, %d" % (256 * 16384))
    a("s_waitcnt lgkmcnt(2)")
    a("buffer_store_dwordx4 v[8:11], v7, s[20:23], s13 offen")
    a("s_waitcnt lgkmcnt(1)")
    a("buffer_store_dwordx4 v[12:15], v7, s[20:23], s24 offen")
    a("s_waitcnt lgkmcnt(0)")
    a("v_cmp_gt_u32 vcc, %d, v0" % (1284 - 1024))
    a("s_and_saveexec_b64 s[32:33], vcc")
    a("buffer_store_dwordx4 v[16:19], v7, s[20:23], s25 offen")
    a.stamp()
    a.stamp_flush(1, 3)
    a("s_endpgm")
    a.label(L_wt)
    L_rl = a.newlabel("k1rl")
    a("s_cmp_ge_u32 s2, %d" % (256 + K1_NWT))
    a("s_cbranch_scc1 %s" % L_rl)
    a("s_sub_u32 s12, s2, 256")
    a("s_mul_i32 s13, s12, 43691")
    a("s_lshr_b32 s13, s13, 18")
    a("s_mul_i32 s14, s13, 6")
    a("s_sub_u32 s14, s12, s14")
    a("s_lshl_b32 s14, s14, 6")
    a("v_add_u32 v3, s14, v1")
    a("v_min_u32 v3, 320, v3")
    a("s_waitcnt lgkmcnt(0)")
    a.srd(16, 8, WF_BYTES)
    a.srd(20, 10, WF_BYTES)
    a.srd_off(24, 6, WS_WT, WT_BYTES)
    a("v_lshlrev_b32 v4, 1, v3")
    a("s_lshl_b32 s28, s13, 5")
    a("s_lshl_b32 s29, s3, 2")
    a("s_add_u32 s28, s28, s29")
    a("s_and_b32 s29, s28, 7")
    a("s_lshl_b32 s29, s29, 6")
    a("s_lshr_b32 s30, s28, 3")
    a("s_and_b32 s30, s30, 7")
    a("s_lshl_b32 s30, s30, 3")
    a("s_lshr_b32 s31, s28, 6")
    a("s_add_u32 s29, s29, s30")
    a("s_add_u32 s29, s29, s31")
    a("s_mul_i32 s29, s29, 642")
    for i in range(4):
        for tt in range(4):
            k = 64 * i + 512 * tt
            a("s_add_u32 s34, s29, %d" % (k * 642))
            a("buffer_load_ushort v%d, v4, s[16:19], s34 offen" % (8 + 4 * i + tt))
            a("buffer_load_ushort v%d, v4, s[20:23], s34 offen" % (24 + 4 * i + tt))
    a("v_mul_u32_u24 v5, 528, v1")
    a("s_lshl_b32 s30, s3, 6")
    a("v_add_u32 v5, s30, v5")
    a("s_waitcnt vmcnt(0)")
    for i in range(16):
        a("v_lshl_or_b32 v%d, v%d, 16, v%d" % (8 + i, 24 + i, 8 + i))
    for i in range(4):
        a("ds_write_b128 v5, v[%d:%d] offset:%d" % (8 + 4 * i, 11 + 4 * i, 16 * i))
    a("s_waitcnt lgkmcnt(0)")
    a("s_barrier")
    a("v_lshrrev_b32 v6, 5, v0")
    a("v_and_b32 v7, 31, v0")
    a("v_mul_u32_u24 v40, 528, v6")
    a("v_lshl_add_u32 v40, v7, 4, v40")
    a("v_add_u32 v41, s14, v6")
    a("v_lshlrev_b32 v42, 13, v41")
    a("v_lshl_add_u32 v42, v7, 4, v42")
    a("s_lshl_b32 s28, s13, 9")
    for r in range(4):
        a("ds_read_b128 v[%d:%d], v40 offset:%d" % (8 + 4 * r, 11 + 4 * r, r * 16 * 528))
    a("s_waitcnt lgkmcnt(0)")
    for r in range(4):
        a("s_add_u32 s29, s28, %d" % (r * 16 * 8192))
        a("buffer_store_dwordx4 v[%d:%d], v42, s[24:27], s29 offen" % (8 + 4 * r, 11 + 4 * r))
    a.rt_flush(1)
    a("s_endpgm")
    a.label(L_rl)
    if nrl:
        a("s_cmp_ge_u32 s2, %d" % (256 + K1_NWT + nrl))
        a("s_cbranch_scc1 %s" % L_end)
        a("s_sub_u32 s14, s2, %d" % (256 + K1_NWT))
        a("s_lshl_b32 s14, s14, 3")
        a("s_add_u32 s14, s14, s3")
        a("s_waitcnt lgkmcnt(0)")
        rl(a, 1)
    a.label(L_end)
    a("s_endpgm")
    return name, 84, 100


K3_LDSST = __import__("os").environ.get("K3_LDSST", "1") == "1"
K2_PAD = 36
K2_LOCAL = __import__("os").environ.get("K2_LOCAL", "1") == "1"
K2_BUF = 8 * 8 * K2_PAD * 8
K2_LDS = 2 * K2_BUF


def gen_k2(a, extra_path=None, n_extra=0):
    name = "k2_kernel"
    kernel_header(a, name)
    L_x = a.newlabel("k2x")
    L_end = a.newlabel("k2end")
    a("s_load_dwordx2 s[6:7], s[0:1], 72")
    a("s_cmp_ge_u32 s2, 321")
    a("s_cbranch_scc1 %s" % L_x)
    C = fft_consts(a, 40)
    a("s_lshl_b32 s12, s2, 14")
    a("s_lshl_b32 s13, s2, 13")
    a("v_lshlrev_b32 v1, 3, v0")
    a("v_lshlrev_b32 v2, 5, v0")
    a("s_waitcnt lgkmcnt(0)")
    a.srd_off(16, 6, WS_ZT, ZT_BYTES)
    a.srd_off(20, 6, WS_YT, ZT_BYTES)
    a.srd_off(24, 6, WS_WT, WT_BYTES)
    a.stamp_init()
    a.stamp()
    X = [4 + 2 * i for i in range(8)]
    for n1 in range(8):
        a("buffer_load_dwordx2 %s, v1, s[16:19], s12 offen offset:%d" % (a.P(X[n1]), (n1 * 2048) % 4096) if n1 < 2 else
          "buffer_load_dwordx2 %s, v1, s[16:19], s%d offen" % (a.P(X[n1]), 28 + n1))
        if n1 == 1:
            for m in range(2, 8):
                a("s_add_u32 s%d, s12, %d" % (28 + m, m * 2048))
    a("buffer_load_dwordx4 v[92:95], v2, s[24:27], s13 offen")
    a("buffer_load_dwordx4 v[96:99], v2, s[24:27], s13 offen offset:16")
    W1 = [None] + [40 + 2 * i for i in range(7)]
    W2 = [None] + [54 + 2 * i for i in range(7)]
    W3 = [None] + [68 + 2 * i for i in range(7)]
    a("v_cvt_f32_u32 v20, v0")
    a("v_mul_f32 v20, %s, v20" % f32hex(-1.0 / 2048))
    a.sincos_pair(40, 20)
    a("v_and_b32 v21, 31, v0")
    a("v_cvt_f32_u32 v20, v21")
    a("v_mul_f32 v20, %s, v20" % f32hex(-1.0 / 256))
    a.sincos_pair(54, 20)
    a("v_and_b32 v22, 3, v0")
    a("v_cvt_f32_u32 v20, v22")
    a("v_mul_f32 v20, %s, v20" % f32hex(-1.0 / 32))
    a.sincos_pair(68, 20)
    a("s_nop 0")
    a.twiddle_powers(W1, 7, 24)
    a.twiddle_powers(W2, 7, 24)
    a.twiddle_powers(W3, 7, 24)
    a("v_lshrrev_b32 v23, 5, v0")
    a("v_mul_u32_u24 v82, 36, v23")
    a("v_add_u32 v82, v82, v21")
    a("v_lshlrev_b32 v82, 3, v82")
    a("v_mul_u32_u24 v83, 288, v23")
    a("v_add_u32 v84, v83, v22")
    a("v_add_u32 v83, v83, v21")
    a("v_lshlrev_b32 v83, 3, v83")
    a("v_bfe_u32 v24, v0, 2, 3")
    a("v_mul_u32_u24 v24, 36, v24")
    a("v_add_u32 v84, v84, v24")
    a("v_mul_u32_u24 v85, 7, v22")
    a("v_add_u32 v85, v85, v84")
    a("v_lshlrev_b32 v84, 3, v84")
    a("v_lshlrev_b32 v85, 3, v85")
    pool = [20, 22, 24, 26, 28, 30, 32, 34, 36, 38]
    buf = [0]

    def exch(regs, waddr, wstride, raddr, rstride, local=False):
        b = buf[0] * K2_BUF
        buf[0] ^= 1
        for i, r in enumerate(regs):
            a("ds_write_b64 v%d, %s offset:%d" % (waddr, a.P(r), b + i * wstride))
        a("s_waitcnt lgkmcnt(0)")
        if not (local and K2_LOCAL):
            a("s_barrier")
        for i, r in enumerate(regs):
            a("ds_read_b64 %s, v%d offset:%d" % (a.P(r), raddr, b + i * rstride))
        a("s_waitcnt lgkmcnt(0)")

    def twid(regs, W, conj):
        t = pool.pop()
        for i in range(1, 8):
            a.cmul(regs[i], regs[i], W[i], t, conj=conj)
        pool.append(t)

    a.stamp()
    a("s_waitcnt vmcnt(2)")
    a.stamp()
    R = a.radix8(X, pool, -1, C["r2"])
    twid(R, W1, False)
    exch(R, 82, 2304, 83, 288)
    R = a.radix8(R, pool, -1, C["r2"])
    twid(R, W2, False)
    exch(R, 83, 288, 84, 32, True)
    R = a.radix8(R, pool, -1, C["r2"])
    twid(R, W3, False)
    exch(R, 84, 32, 85, 8, True)
    Ra = a.radix4(R[0:4], pool, -1)
    Rb = a.radix4(R[4:8], pool, -1)
    R = Ra + Rb
    a.stamp()
    a("s_waitcnt vmcnt(0)")
    a.stamp()
    t = pool.pop()
    w = pool.pop()
    for i in range(8):
        a("v_lshlrev_b32 v%d, 16, v%d" % (w, 92 + i))
        a("v_and_b32 v%d, 0xffff0000, v%d" % (w + 1, 92 + i))
        a.cmul(R[i], R[i], w, t)
    pool.append(t)
    pool.append(w)
    Ra = a.radix4(R[0:4], pool, +1)
    Rb = a.radix4(R[4:8], pool, +1)
    R = Ra + Rb
    exch(R, 85, 8, 84, 32, True)
    twid(R, W3, True)
    R = a.radix8(R, pool, +1, C["r2"])
    exch(R, 84, 32, 83, 288, True)
    twid(R, W2, True)
    R = a.radix8(R, pool, +1, C["r2"])
    exch(R, 83, 288, 82, 2304)
    twid(R, W1, True)
    R = a.radix8(R, pool, +1, C["r2"])
    a("v_lshrrev_b32 v86, 3, v0")
    a("v_mul_u32_u24 v86, 20544, v86")
    a("v_and_b32 v87, 7, v0")
    a("v_lshl_add_u32 v86, v87, 3, v86")
    a("s_lshl_b32 s12, s2, 6")
    for n1 in range(8):
        a("s_add_u32 s13, s12, %d" % (n1 * 32 * 20544))
        a("buffer_store_dwordx2 %s, v86, s[20:23], s13 offen" % a.P(R[n1]))
    a.stamp()
    if a.stamps_on:
        a("v_lshrrev_b32 v2, 6, v0")
        a("s_nop 0")
        a("v_readfirstlane_b32 s3, v2")
    a.stamp_flush(2, 3)
    a("s_endpgm")
    a.label(L_x)
    if extra_path is not None:
        extra_path(a, L_end)
    a.label(L_end)
    a("s_endpgm")
    return name, 100, 100


def gen_k3(a, rl=None, nrl=0):
    name = "k3_kernel"
    kernel_header(a, name)
    L_end = a.newlabel("k3end")
    L_pf = a.newlabel("k3pf")
    a("s_cmp_ge_u32 s2, 256")
    a("s_cbranch_scc1 %s" % L_pf)
    a("s_load_dwordx2 s[4:5], s[0:1], 0")
    a("s_load_dwordx2 s[6:7], s[0:1], 72")
    a("v_and_b32 v1, 63, v0")
    a("v_lshrrev_b32 v2, 6, v0")
    a("s_nop 0")
    a("v_readfirstlane_b32 s3, v2")
    C = fft_consts(a, 40)
    a("s_mov_b32 s50, %s" % f32hex(1.0 / 640))
    a.sconst_pair(52, 1.0 / (640.0 * 2048.0 * 2.0))
    a("s_and_b32 s12, s2, 7")
    a("s_lshl_b32 s12, s12, 5")
    a("s_lshr_b32 s13, s2, 3")
    a("s_add_u32 s51, s12, s13")
    a("s_lshl_b32 s12, s51, 3")
    a("s_add_u32 s12, s12, s3")
    a("s_mul_i32 s13, s12, 1280")
    a("v_lshlrev_b32 v3, 2, v1")
    a("v_lshrrev_b32 v4, 2, v0")
    a("v_and_b32 v5, 3, v0")
    a("v_mul_u32_u24 v6, 80, v4")
    a("v_lshlrev_b32 v5, 4, v5")
    a("v_add_u32 v6, v6, v5")
    a("v_add_u32 v6, %d, v6" % TBASE)
    a("v_lshlrev_b32 v7, 4, v0")
    a("s_mul_i32 s34, s51, 20544")
    a("s_add_u32 s35, s34, 8192")
    a("s_add_u32 s36, s34, 16384")
    a("s_waitcnt lgkmcnt(0)")
    a.srd(16, 4, X_BYTES)
    a.srd_off(20, 6, WS_YT, ZT_BYTES)
    a.srd_off(24, 6, WS_H, X_BYTES)
    a.srd_off(28, 6, WS_LN2F, X_BYTES)
    a.stamp_init()
    a.stamp()
    a("buffer_load_dwordx4 v[8:11], v7, s[20:23], s34 offen")
    a("buffer_load_dwordx4 v[12:15], v7, s[20:23], s35 offen")
    a("buffer_load_dwordx4 v[16:19], v7, s[20:23], s36 offen")
    for j in range(5):
        a("buffer_load_dword v%d, v3, s[16:19], s13 offen offset:%d" % (84 + j, j * 256))
    W1 = [None, 40, 42, 44, 46]
    a("v_cvt_f32_u32 v20, v1")
    a("v_mul_f32 v21, %s, v20" % f32hex(-1.0 / 320))
    a.sincos_pair(40, 21)
    a("s_nop 0")
    a.twiddle_powers(W1, 4, 22)
    W2 = [None] + [48 + 2 * i for i in range(7)]
    a("v_and_b32 v21, 7, v1")
    a("v_cvt_f32_u32 v21, v21")
    a("v_mul_f32 v21, %s, v21" % f32hex(-1.0 / 64))
    a.sincos_pair(48, 21)
    a("s_nop 0")
    a.twiddle_powers(W2, 7, 22)
    W3 = [62 + 2 * j for j in range(5)]
    for j in range(5):
        a("v_mov_b32 v21, %s" % f32hex(-64.0 * j / 640))
        a("v_fmac_f32 v21, %s, v20" % f32hex(-1.0 / 640))
        a("v_sin_f32 v%d, v21" % W3[j])
        a("v_cos_f32 v%d, v21" % (W3[j] + 1))
    a("s_mul_i32 s14, s3, %d" % WSCR)
    a("v_lshlrev_b32 v72, 3, v1")
    a("v_add_u32 v72, s14, v72")
    a("v_lshrrev_b32 v73, 3, v1")
    a("v_mul_u32_u24 v74, 576, v73")
    a("v_and_b32 v75, 7, v1")
    a("v_lshlrev_b32 v76, 3, v75")
    a("v_add3_u32 v76, v74, v76, s14")
    a("v_mul_u32_u24 v77, 72, v75")
    a("v_add3_u32 v77, v74, v77, s14")
    a("v_mul_u32_u24 v78, 5, v75")
    a("v_add_u32 v78, v78, v73")
    a("v_lshlrev_b32 v78, 3, v78")
    a("v_add_u32 v78, s14, v78")
    a("s_lshl_b32 s15, s3, 3")
    a("s_add_u32 s15, s15, %d" % TBASE)
    a("v_mul_u32_u24 v80, 80, v1")
    a("v_add_u32 v80, s15, v80")
    a("v_sub_u32 v81, 64, v1")
    a("v_mul_u32_u24 v81, 80, v81")
    a("v_add_u32 v81, s15, v81")
    a("v_cmp_gt_u32 vcc, %d, v0" % (1284 - 1024))
    a("s_and_saveexec_b64 s[32:33], vcc")
    a.stamp()
    a("s_waitcnt vmcnt(5)")
    a.stamp()
    a("ds_write_b128 v6, v[16:19] offset:%d" % (2 * 128 * 80))
    a("s_mov_b64 exec, s[32:33]")
    a("ds_write_b128 v6, v[8:11]")
    a("ds_write_b128 v6, v[12:15] offset:%d" % (128 * 80))
    a("s_waitcnt lgkmcnt(0)")
    a("s_barrier")
    a.stamp()
    pool = [8, 10, 12, 14, 16, 18, 20, 22, 24, 26, 28, 30, 32, 34, 36, 38]
    Yk = [pool.pop() for _ in range(5)]
    Ym = [pool.pop() for _ in range(5)]
    for j in range(5):
        a("ds_read_b64 %s, v80 offset:%d" % (a.P(Yk[j]), j * 5120))
        a("ds_read_b64 %s, v81 offset:%d" % (a.P(Ym[j]), (4 - j) * 5120))
    a("s_waitcnt lgkmcnt(0)")
    a("s_mov_b64 exec, 1")
    a("v_mov_b32 v%d, 0" % (Yk[0] + 1))
    a("v_mov_b32 v%d, 0" % (Ym[0] + 1))
    a("s_mov_b64 exec, s[32:33]")
    S = pool.pop()
    t = pool.pop()
    for j in range(5):
        yk, ym = Yk[j], Ym[j]
        a("v_pk_add_f32 %s, %s, %s neg_hi:[0,1]" % (a.P(S), a.P(yk), a.P(ym)))
        a("v_pk_add_f32 %s, %s, %s neg_lo:[0,1]" % (a.P(yk), a.P(yk), a.P(ym)))
        a.cmul_acc(yk, yk, W3[j], S, t)
        a("ds_write_b64 v72, %s offset:%d" % (a.P(yk), j * 512))
    pool += [S, t] + Yk + Ym
    a("s_waitcnt lgkmcnt(0)")
    B = [pool.pop() for _ in range(8)]
    for q2 in range(8):
        a("ds_read_b64 %s, v78 offset:%d" % (a.P(B[q2]), q2 * 320))
    a("s_waitcnt lgkmcnt(0)")
    B = a.radix8(B, pool, +1, C["r2"])
    t = pool.pop()
    for m2 in range(1, 8):
        a.cmul(B[m2], B[m2], W2[m2], t, conj=True)
    pool.append(t)
    a("v_cmp_gt_u32 vcc, 40, v1")
    a("s_and_saveexec_b64 s[32:33], vcc")
    for m2 in range(8):
        a("ds_write_b64 v77, %s offset:%d" % (a.P(B[m2]), m2 * 8))
    a("s_mov_b64 exec, s[32:33]")
    pool += B
    a("s_waitcnt lgkmcnt(0)")
    B = [pool.pop() for _ in range(8)]
    for q1 in range(8):
        a("ds_read_b64 %s, v76 offset:%d" % (a.P(B[q1]), q1 * 72))
    a("s_waitcnt lgkmcnt(0)")
    B = a.radix8(B, pool, +1, C["r2"])
    a("s_mov_b64 exec, vcc")
    for m1 in range(8):
        a("ds_write_b64 v76, %s offset:%d" % (a.P(B[m1]), m1 * 64))
    a("s_mov_b64 exec, s[32:33]")
    pool += B
    a("s_waitcnt lgkmcnt(0)")
    A = [pool.pop() for _ in range(5)]
    for k1 in range(5):
        a("ds_read_b64 %s, v72 offset:%d" % (a.P(A[k1]), k1 * 576))
    a("s_waitcnt lgkmcnt(0)")
    t = pool.pop()
    for k1 in range(1, 5):
        a.cmul(A[k1], A[k1], W1[k1], t, conj=True)
    pool.append(t)
    Z = a.radix5(A, pool, +1, C["c1"], C["c2"], C["s1"], C["s2"])
    a.stamp()
    a("s_waitcnt vmcnt(0)")
    t = pool.pop()
    for j in range(5):
        z = Z[j]
        a.cmul_real(z, z, 52)
        a("v_cvt_pk_bf16_f32 v%d, v%d, v%d" % (z + 1, z, z + 1))
        a("v_lshlrev_b32 v%d, 16, v%d" % (z, z + 1))
        a("v_and_b32 v%d, 0xffff0000, v%d" % (z + 1, z + 1))
        a("v_lshlrev_b32 v%d, 16, v%d" % (t, 84 + j))
        a("v_and_b32 v%d, 0xffff0000, v%d" % (t + 1, 84 + j))
        a.cadd(z, z, t)
        a("v_cvt_pk_bf16_f32 v%d, v%d, v%d" % (84 + j, z, z + 1))
        a("v_lshlrev_b32 v%d, 16, v%d" % (z, 84 + j))
        a("v_and_b32 v%d, 0xffff0000, v%d" % (z + 1, 84 + j))
        a("buffer_store_dword v%d, v3, s[24:27], s13 offen offset:%d" % (84 + j, j * 256))
    pk = emit_layernorm(a, Z, 40, 38, 50)
    if K3_LDSST:
        a("v_add_u32 v60, s14, v3")
        for j in range(5):
            a("ds_write_b32 v60, v%d offset:%d" % (pk[j], j * 256))
        a("v_lshrrev_b32 v61, 3, v0")
        a("v_and_b32 v62, 7, v0")
        a("v_mul_u32_u24 v63, %d, v62" % WSCR)
        a("v_lshl_add_u32 v63, v61, 4, v63")
        a("v_lshrrev_b32 v64, 1, v61")
        a("v_lshlrev_b32 v64, 10, v64")
        a("v_and_b32 v65, 1, v61")
        a("v_lshl_add_u32 v64, v65, 9, v64")
        a("v_lshl_add_u32 v64, v62, 4, v64")
        a("s_lshr_b32 s36, s51, 2")
        a("s_mul_i32 s36, s36, 40960")
        a("s_and_b32 s37, s51, 3")
        a("s_lshl_b32 s37, s37, 7")
        a("s_add_u32 s36, s36, s37")
        a("s_add_u32 s37, s36, 32768")
        a("s_waitcnt lgkmcnt(0)")
        a("s_barrier")
        a("ds_read_b128 v[8:11], v63")
        a("ds_read_b128 v[12:15], v63 offset:1024")
        a("s_waitcnt lgkmcnt(1)")
        a("buffer_store_dwordx4 v[8:11], v64, s[28:31], s36 offen")
        a("v_cmp_gt_u32 vcc, 128, v0")
        a("s_and_saveexec_b64 s[32:33], vcc")
        a("s_waitcnt lgkmcnt(0)")
        a("buffer_store_dwordx4 v[12:15], v64, s[28:31], s37 offen")
        a("s_mov_b64 exec, s[32:33]")
    else:
        a("v_lshrrev_b32 v60, 3, v1")
        a("v_lshlrev_b32 v60, 10, v60")
        a("v_bfe_u32 v61, v1, 2, 1")
        a("v_lshlrev_b32 v61, 9, v61")
        a("v_and_b32 v62, 3, v1")
        a("v_lshlrev_b32 v62, 2, v62")
        a("v_add3_u32 v60, v60, v61, v62")
        a("s_lshr_b32 s36, s12, 5")
        a("s_mul_i32 s36, s36, 40960")
        a("s_and_b32 s37, s12, 31")
        a("s_lshl_b32 s37, s37, 4")
        a("s_add_u32 s36, s36, s37")
        for j in range(5):
            a("s_add_u32 s37, s36, %d" % (j * 8192))
            a("buffer_store_dword v%d, v60, s[28:31], s37 offen" % pk[j])
    a.stamp()
    a.stamp_flush(3, 3)
    a("s_endpgm")
    a.label(L_pf)
    L_rl = a.newlabel("k3rl")
    a("s_load_dwordx2 s[6:7], s[0:1], 72")
    a("v_and_b32 v1, 63, v0")
    a("v_lshrrev_b32 v2, 6, v0")
    a("s_nop 0")
    a("v_readfirstlane_b32 s3, v2")
    a("s_cmp_ge_u32 s2, %d" % (256 + K3_NPF))
    a("s_cbranch_scc1 %s" % L_rl)
    a("s_and_b32 s12, s2, 1")
    a("s_lshl_b32 s12, s12, 3")
    a("s_sub_u32 s13, s2, 256")
    a("s_lshr_b32 s13, s13, 3")
    a("s_add_u32 s12, s12, s13")
    a("s_mul_i32 s12, s12, 245760")
    a("s_mul_i32 s13, s3, 30720")
    a("s_add_u32 s12, s12, s13")
    a("v_lshlrev_b32 v3, 6, v1")
    a("s_waitcnt lgkmcnt(0)")
    a.srd_off(16, 6, WS_WGU, 3840 * 1024)
    for i in range(8):
        a("buffer_load_dword v%d, v3, s[16:19], s12 offen" % (4 + i))
        a("s_add_u32 s12, s12, %d" % (4096 if i < 6 else 2048))
    a("s_endpgm")
    a.label(L_rl)
    if nrl:
        a("s_cmp_ge_u32 s2, %d" % (256 + K3_NPF + nrl))
        a("s_cbranch_scc1 %s" % L_end)
        a("s_sub_u32 s14, s2, %d" % (256 + K3_NPF))
        a("s_lshl_b32 s14, s14, 3")
        a("s_add_u32 s14, s14, s3")
        a("s_waitcnt lgkmcnt(0)")
        rl(a, 3)
    a.label(L_end)
    a("s_endpgm")
    return name, 96, 100
```

```python
import math
from asmlib import *
from fft_kernels import *

WS_BYTES = 0x10000000
import os
RL_MODE = int(os.environ.get("RL_MODE", "0"))
K2_NEXTRA = {0: 180, 1: 0, 2: 60}[RL_MODE]
K1_NRL = 0 if RL_MODE == 0 else 60
K3_NRL = 30 if RL_MODE == 1 else 0


def transpose8x8(a, src, dst):
    for j in range(8):
        for p in range(4):
            lo = src + 4 * (2 * p) + j // 2
            hi = src + 4 * (2 * p + 1) + j // 2
            a("v_perm_b32 v%d, v%d, v%d, s%d" % (dst + 4 * j + p, hi, lo, 37 if j & 1 else 36))


def store_lines_via_lds(a, vaddr, sbase):
    a("s_mul_i32 s26, s3, 9216")
    a("v_mul_u32_u24 v72, 144, v1")
    a("v_add_u32 v72, s26, v72")
    for j in range(8):
        a("ds_write_b128 v72, v[%d:%d] offset:%d" % (40 + 4 * j, 43 + 4 * j, j * 16))
    a("v_lshrrev_b32 v73, 3, v1")
    a("v_mul_u32_u24 v74, 144, v73")
    a("v_and_b32 v75, 7, v1")
    a("v_lshl_add_u32 v74, v75, 4, v74")
    a("v_add_u32 v74, s26, v74")
    a("v_lshlrev_b32 v73, 2, v73")
    a("v_lshlrev_b32 v75, 4, v75")
    a("s_waitcnt lgkmcnt(0)")
    for m in range(8):
        a("ds_read_b128 v[%d:%d], v74 offset:%d" % (40 + 4 * m, 43 + 4 * m, m * 8 * 144))
        a("ds_bpermute_b32 v%d, v73, v%d offset:%d" % (8 + m, vaddr, m * 32))
    a("s_waitcnt lgkmcnt(0)")
    for m in range(8):
        a("v_add_u32 v%d, v%d, v75" % (8 + m, 8 + m))
    for m in range(8):
        a("buffer_store_dwordx4 v[%d:%d], v%d, s[28:31], s%d offen" % (40 + 4 * m, 43 + 4 * m, 8 + m, sbase))


def relayout_wgu(a, kidx):
    a("s_load_dwordx4 s[8:11], s[0:1], 32")
    a("s_mov_b32 s36, 0x05040100")
    a("s_mov_b32 s37, 0x07060302")
    L_up = a.newlabel("rl_up")
    L_go = a.newlabel("rl_go")
    a("s_mul_i32 s20, s14, 43691")
    a("s_lshr_b32 s20, s20, 17")
    a("s_mul_i32 s21, s20, 3")
    a("s_sub_u32 s21, s14, s21")
    a("s_and_b32 s15, s20, 1")
    a("s_lshr_b32 s20, s20, 1")
    a("s_waitcnt lgkmcnt(0)")
    a.srd(28, 6, WS_BYTES)
    a("s_cmp_eq_u32 s15, 1")
    a("s_cbranch_scc1 %s" % L_up)
    a.srd(16, 8, 640 * 1536 * 2)
    a("s_branch %s" % L_go)
    a.label(L_up)
    a.srd(16, 10, 640 * 1536 * 2)
    a.label(L_go)
    a("s_lshl_b32 s22, s21, 6")
    a("v_add_u32 v3, s22, v1")
    a("v_lshlrev_b32 v4, 4, v3")
    a("s_mul_i32 s22, s20, 24576")
    for r in range(8):
        a("s_add_u32 s24, s22, %d" % (r * 3072))
        a("buffer_load_dwordx4 v[%d:%d], v4, s[16:19], s24 offen" % (8 + 4 * r, 11 + 4 * r))
    a("v_lshrrev_b32 v5, 1, v3")
    a("v_mul_u32_u24 v5, 40960, v5")
    a("v_and_b32 v6, 1, v3")
    a("v_lshl_add_u32 v5, v6, 7, v5")
    a("s_lshr_b32 s22, s20, 1")
    a("s_lshl_b32 s22, s22, 10")
    a("s_and_b32 s23, s20, 1")
    a("s_lshl_b32 s23, s23, 9")
    a("s_add_u32 s22, s22, s23")
    a("s_lshl_b32 s23, s15, 8")
    a("s_add_u32 s22, s22, s23")
    a("s_add_u32 s22, s22, 0x%x" % WS_WGU)
    a("s_waitcnt vmcnt(0)")
    transpose8x8(a, 8, 40)
    store_lines_via_lds(a, 5, 22)
    a.rt_flush(kidx)
    a("s_endpgm")


def relayout_wdf(a, kidx):
    a("s_load_dwordx2 s[12:13], s[0:1], 48")
    a("s_mov_b32 s36, 0x05040100")
    a("s_mov_b32 s37, 0x07060302")
    a("s_lshl_b32 s14, s14, 6")
    a("v_add_u32 v3, s14, v1")
    a("s_mov_b32 s20, 52429")
    a("v_mul_lo_u32 v4, v3, s20")
    a("v_lshrrev_b32 v4, 22, v4")
    a("v_mul_u32_u24 v5, 80, v4")
    a("v_sub_u32 v5, v3, v5")
    a("v_mul_u32_u24 v6, 10240, v4")
    a("v_lshl_add_u32 v6, v5, 4, v6")
    a("s_waitcnt lgkmcnt(0)")
    a.srd(28, 6, WS_BYTES)
    a.srd(16, 12, 1536 * 640 * 2)
    for r in range(8):
        if r < 4:
            a("buffer_load_dwordx4 v[%d:%d], v6, s[16:19], 0 offen offset:%d" % (8 + 4 * r, 11 + 4 * r, r * 1280))
        else:
            if r == 4:
                a("s_movk_i32 s24, 5120")
            a("buffer_load_dwordx4 v[%d:%d], v6, s[16:19], s24 offen offset:%d" % (8 + 4 * r, 11 + 4 * r, (r - 4) * 1280))
    a("v_lshrrev_b32 v7, 1, v5")
    a("v_mul_u32_u24 v7, 49152, v7")
    a("v_lshrrev_b32 v3, 2, v4")
    a("v_lshl_add_u32 v7, v3, 10, v7")
    a("v_and_b32 v3, 3, v4")
    a("v_lshl_add_u32 v7, v3, 8, v7")
    a("v_and_b32 v3, 1, v5")
    a("v_lshl_add_u32 v7, v3, 7, v7")
    a("s_mov_b32 s22, 0x%x" % WS_WDF)
    a("s_waitcnt vmcnt(0)")
    transpose8x8(a, 8, 40)
    store_lines_via_lds(a, 7, 22)
    a.rt_flush(kidx)
    a("s_endpgm")


def relayout_path(a, L_end):
    if K2_NEXTRA == 0:
        return
    L_wd = a.newlabel("rl_wd")
    a("s_cmp_ge_u32 s2, %d" % (321 + K2_NEXTRA))
    a("s_cbranch_scc1 %s" % L_end)
    a("v_and_b32 v1, 63, v0")
    a("v_lshrrev_b32 v2, 6, v0")
    a("s_nop 0")
    a("v_readfirstlane_b32 s3, v2")
    a("s_sub_u32 s14, s2, 321")
    a("s_lshl_b32 s14, s14, 2")
    a("s_add_u32 s14, s14, s3")
    if RL_MODE == 0:
        a("s_cmp_ge_u32 s14, 480")
        a("s_cbranch_scc1 %s" % L_wd)
        relayout_wgu(a, 2)
        a.label(L_wd)
        a("s_sub_u32 s14, s14, 480")
    relayout_wdf(a, 2)


K4_SLOT = 20480
K4_NS = 6
K4_PREFETCH = False
K4_STFLAG = os.environ.get("K4_STFLAG", " sc1")
K4_PRO = int(os.environ.get("K4_PRO", "3"))
K4_LDS = K4_NS * K4_SLOT


def gelu_epilogue_tile(a, acc, T):
    G = [T + 2 * p for p in range(4)]
    U = [T + 8 + 2 * p for p in range(4)]
    Z = [T + 16 + 2 * p for p in range(4)]
    for p in range(4):
        a("v_cvt_pk_bf16_f32 v%d, v%d, v%d" % (G[p] + 1, acc + 2 * p, acc + 2 * p + 1))
    for p in range(4):
        a("v_cvt_pk_bf16_f32 v%d, v%d, v%d" % (U[p] + 1, acc + 8 + 2 * p, acc + 9 + 2 * p))
    for p in range(4):
        a("v_lshlrev_b32 v%d, 16, v%d" % (G[p], G[p] + 1))
        a("v_and_b32 v%d, 0xffff0000, v%d" % (G[p] + 1, G[p] + 1))
    for p in range(4):
        a("v_pk_mul_f32 %s, %s, %s" % (a.P(Z[p]), a.P(G[p]), a.P(G[p])))
    for p in range(4):
        a("v_pk_fma_f32 %s, %s, s[40:41], %s" % (a.P(Z[p]), a.P(Z[p]), a.P(T + 24)))
    for p in range(4):
        a("v_pk_mul_f32 %s, %s, %s" % (a.P(Z[p]), a.P(Z[p]), a.P(G[p])))
    for p in range(4):
        a("v_exp_f32 v%d, v%d" % (Z[p], Z[p]))
        a("v_exp_f32 v%d, v%d" % (Z[p] + 1, Z[p] + 1))
    for p in range(4):
        a("v_lshlrev_b32 v%d, 16, v%d" % (U[p], U[p] + 1))
        a("v_and_b32 v%d, 0xffff0000, v%d" % (U[p] + 1, U[p] + 1))
    for p in range(4):
        a("v_pk_add_f32 %s, %s, s[44:45]" % (a.P(Z[p]), a.P(Z[p])))
    for p in range(4):
        a("v_rcp_f32 v%d, v%d" % (Z[p], Z[p]))
        a("v_rcp_f32 v%d, v%d" % (Z[p] + 1, Z[p] + 1))
    a("s_nop 0")
    for p in range(4):
        a("v_pk_mul_f32 %s, %s, %s" % (a.P(Z[p]), a.P(Z[p]), a.P(G[p])))
    for p in range(4):
        a("v_cvt_pk_bf16_f32 v%d, v%d, v%d" % (Z[p] + 1, Z[p], Z[p] + 1))
    for p in range(4):
        a("v_lshlrev_b32 v%d, 16, v%d" % (Z[p], Z[p] + 1))
        a("v_and_b32 v%d, 0xffff0000, v%d" % (Z[p] + 1, Z[p] + 1))
    for p in range(4):
        a("v_pk_mul_f32 %s, %s, %s" % (a.P(Z[p]), a.P(Z[p]), a.P(U[p])))
    for p in range(4):
        a("v_cvt_pk_bf16_f32 v%d, v%d, v%d" % (acc + p, Z[p], Z[p] + 1))


def gen_k4(a):
    name = "k4_kernel"
    kernel_header(a, name)
    L_end = a.newlabel("k4end")
    a("s_cmp_ge_u32 s2, 256")
    a("s_cbranch_scc1 %s" % L_end)
    a("s_load_dwordx2 s[6:7], s[0:1], 72")
    a("v_and_b32 v1, 63, v0")
    a("v_lshrrev_b32 v2, 6, v0")
    a("s_nop 0")
    a("v_readfirstlane_b32 s3, v2")
    a("s_and_b32 s13, s2, 7")
    a("s_lshr_b32 s14, s2, 3")
    a("s_and_b32 s8, s13, 1")
    a("s_lshl_b32 s8, s8, 3")
    a("s_and_b32 s15, s14, 7")
    a("s_add_u32 s8, s8, s15")
    a("s_lshr_b32 s9, s13, 1")
    a("s_lshl_b32 s9, s9, 2")
    a("s_lshr_b32 s15, s14, 3")
    a("s_add_u32 s9, s9, s15")
    a("s_bfe_u32 s10, s3, 0x10001")
    a("s_and_b32 s11, s3, 1")
    a("s_lshr_b32 s30, s3, 2")
    a("v_lshlrev_b32 v3, 4, v1")
    a("s_lshr_b32 s13, s3, 1")
    a("s_and_b32 s14, s3, 1")
    a("s_lshl_b32 s14, s14, 10")
    a("s_lshl_b32 s15, s9, 2")
    a("s_add_u32 s15, s15, s13")
    a("s_mul_i32 s20, s15, 40960")
    a("s_add_u32 s20, s20, s14")
    a("s_add_u32 s20, s20, 0x%x" % WS_LN2F)
    a("s_mul_i32 s15, s8, 6")
    a("s_add_u32 s15, s15, s13")
    a("s_mul_i32 s21, s15, 40960")
    a("s_add_u32 s21, s21, s14")
    a("s_add_u32 s21, s21, 0x%x" % WS_WGU)
    a("s_add_u32 s22, s21, %d" % (4 * 40960))
    a("s_lshl_b32 s12, s3, 10")
    a("s_lshl_b32 s13, s10, 12")
    a("s_lshl_b32 s14, s30, 10")
    a("s_add_u32 s13, s13, s14")
    a("v_add_u32 v5, s13, v3")
    a("v_add_u32 v6, %d, v5" % (3 * K4_SLOT))
    a("s_mul_i32 s13, s11, 6144")
    a("s_add_u32 s13, s13, 8192")
    a("s_add_u32 s13, s13, s14")
    a("v_add_u32 v8, s13, v3")
    a("v_add_u32 v9, %d, v8" % (3 * K4_SLOT))
    a("v_lshlrev_b32 v14, 6, v1")
    a("s_and_b32 s31, s2, 1")
    a("s_mul_i32 s31, s31, %d" % (20 * 49152))
    a("s_lshr_b32 s13, s2, 3")
    a("s_mul_i32 s13, s13, 30720")
    a("s_add_u32 s31, s31, s13")
    a("s_lshl_b32 s13, s3, 12")
    a("s_add_u32 s31, s31, s13")
    a("s_add_u32 s31, s31, 0x%x" % WS_WDF)
    a("s_waitcnt lgkmcnt(0)")
    a.srd(16, 6, WS_BYTES)
    a.stamp_init()
    a.stamp()
    ACC = 64
    FR = [[16 + 20 * s + 4 * i for i in range(5)] for s in range(2)]
    NST = 20
    D = K4_NS - 1
    L_g1 = a.newlabel("k4g1")
    L_join = a.newlabel("k4join")
    a("s_cmp_eq_u32 s30, 1")
    a("s_cbranch_scc1 %s" % L_g1)
    for g in range(2):
        nd = 3 if g == 0 else 2

        def dma_list(stage):
            slot = stage % K4_NS
            out = []
            for c in range(nd):
                out.append(["s_add_u32 m0, s12, %d" % (slot * K4_SLOT + c * 8192),
                            "s_nop 0",
                            "buffer_load_dwordx4 v3, s[16:19], s%d offen lds" % (20 + c),
                            "s_add_u32 s%d, s%d, 2048" % (20 + c, 20 + c)])
            return out

        def read_list(stage, st):
            slot = stage % K4_NS
            f = FR[st]
            hi = slot // 3
            so = (slot % 3) * K4_SLOT
            out = []
            for i in range(2):
                out.append("ds_read_b128 v[%d:%d], v%d offset:%d" % (f[i], f[i] + 3, 5 + hi, so + i * 2048))
            for i in range(3):
                out.append("ds_read_b128 v[%d:%d], v%d offset:%d" % (f[2 + i], f[2 + i] + 3, 8 + hi, so + i * 2048))
            return out

        def mfma_list(st, first):
            f = FR[st]
            out = []
            for i in range(2):
                for j in range(3):
                    acc = ACC + 16 * (i * 3 + j)
                    c = "0" if first else "v[%d:%d]" % (acc, acc + 15)
                    out.append("v_mfma_f32_32x32x16_bf16 v[%d:%d], v[%d:%d], v[%d:%d], %s"
                               % (acc, acc + 15, f[2 + j], f[2 + j] + 3, f[i], f[i] + 3, c))
            return out

        for s in range(K4_PRO):
            for d in dma_list(s):
                for x in d:
                    a(x)
        NPF = 0
        a("s_waitcnt vmcnt(%d)" % (nd * (K4_PRO - 1)))
        a("s_barrier")
        if g == 0:
            a.stamp()
        for x in read_list(0, 0):
            a(x)
        for s in range(K4_PRO, D):
            for d in dma_list(s):
                for x in d:
                    a(x)
        for s in range(NST):
            issued = min(s + D - 1, NST - 1)
            mf = mfma_list(s & 1, s == 0)
            fill = [[] for _ in range(6)]
            if s + 1 < NST:
                a("s_waitcnt vmcnt(%d) lgkmcnt(0)" % (nd * (issued - (s + 1)) + (1 if s > 15 else 0)))
                a("s_barrier")
                rl = read_list(s + 1, (s + 1) & 1)
                fill[0] = rl[0:2]
                fill[1] = rl[2:4]
                fill[2] = rl[4:5]
                if s + D < NST:
                    dl = dma_list(s + D)
                    for i, d in enumerate(dl):
                        fill[2 + i] = fill[2 + i] + d
            else:
                a("s_waitcnt lgkmcnt(0)")
            if s == 15:
                fill[3] = fill[3] + ["buffer_load_dword v160, v14, s[16:19], s31 offen"]
            for i in range(6):
                a(mf[i])
                for x in fill[i]:
                    a(x)
            if g == 0 and s in (1, 10):
                a.stamp()
        if g == 0:
            a("s_branch %s" % L_join)
            a.label(L_g1)
            if a.stamps_on:
                a.nst -= 3
    a.label(L_join)
    if a.stamps_on:
        a.nst += 3
    a("s_barrier")
    a("s_nop 7")
    a.stamp()
    a("s_mul_i32 s13, s3, 12288")
    a("v_add_u32 v10, s13, v3")
    a("s_xor_b32 s13, s3, 4")
    a("s_mul_i32 s13, s13, 12288")
    a("v_add_u32 v11, s13, v3")
    a("v_bfe_u32 v12, v1, 4, 1")
    a("v_mul_u32_u24 v12, 49152, v12")
    a("v_and_b32 v13, 15, v1")
    a("v_lshl_add_u32 v12, v13, 4, v12")
    a("v_lshrrev_b32 v13, 5, v1")
    a("v_lshl_add_u32 v12, v13, 8, v12")
    a("s_lshl_b32 s13, s9, 2")
    a("s_lshl_b32 s14, s10, 1")
    a("s_add_u32 s13, s13, s14")
    a("s_add_u32 s13, s13, s30")
    a("s_mul_i32 s13, s13, 98304")
    a("s_add_u32 s13, s13, 0x%x" % WS_ACTF)
    a("s_mul_i32 s14, s8, 6")
    a("s_mul_i32 s15, s11, 3")
    a("s_add_u32 s14, s14, s15")
    a("s_lshl_b32 s14, s14, 9")
    a("s_add_u32 s13, s13, s14")
    k = -2.0 * math.sqrt(2.0 / math.pi) * math.log2(math.e)
    a("s_mov_b32 s40, %s" % f32hex(0.044715 * k))
    a("s_mov_b32 s41, %s" % f32hex(0.044715 * k))
    a("v_mov_b32 v40, %s" % f32hex(k))
    a("v_mov_b32 v41, %s" % f32hex(k))
    a("s_mov_b32 s44, 1.0")
    a("s_mov_b32 s45, 1.0")
    L_x1 = a.newlabel("k4x1")
    L_x2 = a.newlabel("k4x2")
    a("s_cmp_eq_u32 s30, 1")
    a("s_cbranch_scc1 %s" % L_x1)
    nst0 = a.nst if a.stamps_on else 0
    for g in range(2):
        KB = ACC + 48 * g
        SB = ACC + 48 * (1 - g)
        if a.stamps_on:
            a.nst = nst0

        def wr(j):
            for q in range(4):
                r = SB + 16 * j + 4 * q
                a("ds_write_b128 v10, v[%d:%d] offset:%d" % (r, r + 3, (4 * j + q) * 1024))

        def rd(j):
            for q in range(4):
                r = SB + 16 * j + 4 * q
                a("ds_read_b128 v[%d:%d], v11 offset:%d" % (r, r + 3, (4 * j + q) * 1024))

        wr(0)
        a("s_waitcnt lgkmcnt(0)")
        a("s_barrier")
        a.stamp()
        for j in range(3):
            rd(j)
            if j < 2:
                wr(j + 1)
                a("s_waitcnt lgkmcnt(4)")
            else:
                a("s_waitcnt lgkmcnt(0)")
            acc = KB + 16 * j
            for r in range(0, 16, 2):
                a.cadd(acc + r, acc + r, SB + 16 * j + r)
            gelu_epilogue_tile(a, acc, 16)
            a("s_nop 1")
            a("v_permlane32_swap_b32 v%d, v%d" % (acc, acc + 2))
            a("v_permlane32_swap_b32 v%d, v%d" % (acc + 1, acc + 3))
            a("buffer_store_dwordx4 v[%d:%d], v12, s[16:19], s13 offen offset:%d%s" % (acc, acc + 3, j * 512, K4_STFLAG))
            if j < 2:
                a("s_waitcnt lgkmcnt(0)")
                a("s_barrier")
            a.stamp()
        if g == 0:
            a("s_branch %s" % L_x2)
            a.label(L_x1)
    a.label(L_x2)
    a.stamp()
    a.stamp_flush(4, 3)
    a.label(L_end)
    a("s_endpgm")
    return name, 164, 100


K5_LDS = 4 * 20 * 1024
K5_DEPTH = int(os.environ.get("K5_DEPTH", "4"))
K5_ILV = os.environ.get("K5_ILV", "1") == "1"
import os
K5_XCDMAP = os.environ.get("K5_XCDMAP", "1") == "1"


def gen_k5(a):
    name = "k5_kernel"
    kernel_header(a, name)
    L_end = a.newlabel("k5end")
    a("s_cmp_ge_u32 s2, 256")
    a("s_cbranch_scc1 %s" % L_end)
    a("s_load_dwordx2 s[6:7], s[0:1], 72")
    a("s_load_dwordx2 s[4:5], s[0:1], 56")
    a("v_and_b32 v1, 63, v0")
    a("v_lshrrev_b32 v2, 6, v0")
    a("s_nop 0")
    a("v_readfirstlane_b32 s3, v2")
    if K5_XCDMAP:
        a("s_and_b32 s13, s2, 7")
        a("s_lshr_b32 s14, s2, 3")
        a("s_and_b32 s8, s13, 1")
        a("s_lshl_b32 s8, s8, 2")
        a("s_and_b32 s15, s14, 3")
        a("s_add_u32 s8, s8, s15")
        a("s_lshr_b32 s9, s13, 1")
        a("s_lshl_b32 s9, s9, 3")
        a("s_lshr_b32 s15, s14, 2")
        a("s_add_u32 s9, s9, s15")
    else:
        a("s_and_b32 s8, s2, 7")
        a("s_lshr_b32 s9, s2, 3")
    a("v_lshlrev_b32 v3, 4, v1")
    if K5_ILV:
        a("s_lshl_b32 s12, s3, 10")
    else:
        a("s_mul_i32 s12, s3, 12288")
    a("s_mul_i32 s13, s9, %d" % (4 * 49152))
    a("s_add_u32 s13, s13, s12")
    a("s_add_u32 s13, s13, 0x%x" % WS_ACTF)
    for i in range(4):
        a("s_add_u32 s%d, s13, %d" % (20 + i, i * 49152))
    a("s_mul_i32 s13, s8, %d" % (5 * 49152))
    a("s_add_u32 s13, s13, s12")
    a("s_add_u32 s13, s13, 0x%x" % WS_WDF)
    for j in range(5):
        a("s_add_u32 s%d, s13, %d" % (24 + j, j * 49152))
    a("s_waitcnt lgkmcnt(0)")
    a.srd(16, 6, WS_BYTES)
    a.srd(32, 4, X_BYTES)
    a.stamp_init()
    a.stamp()
    D = K5_DEPTH
    FB = 16

    def loads(step):
        slot = step % D
        if K5_ILV:
            for i in range(9):
                r = FB + 36 * slot + 4 * i
                a("buffer_load_dwordx4 v[%d:%d], v3, s[16:19], s%d offen" % (r, r + 3, 20 + i))
                a("s_add_u32 s%d, s%d, 4096" % (20 + i, 20 + i))
            return
        if step and step % 4 == 0:
            for i in range(9):
                a("s_add_u32 s%d, s%d, 4096" % (20 + i, 20 + i))
        for i in range(9):
            r = FB + 36 * slot + 4 * i
            a("buffer_load_dwordx4 v[%d:%d], v3, s[16:19], s%d offen offset:%d" % (r, r + 3, 20 + i, (step % 4) * 1024))

    a("v_and_b32 v4, 15, v1")
    a("v_mul_u32_u24 v4, 1280, v4")
    a("v_lshrrev_b32 v5, 4, v1")
    a("v_lshl_add_u32 v4, v5, 3, v4")
    a("s_lshl_b32 s13, s9, 2")
    a("s_add_u32 s13, s13, s3")
    a("s_mul_i32 s13, s13, 20480")
    a("s_mul_i32 s14, s8, 160")
    a("s_add_u32 s13, s13, s14")
    a("s_add_u32 s14, s13, 0x%x" % WS_H)
    for j in range(5):
        a("buffer_load_dwordx2 v[%d:%d], v4, s[16:19], s14 offen offset:%d" % (6 + 2 * j, 7 + 2 * j, j * 32))
    for s in range(D):
        loads(s)
    for s in range(12):
        rem = min(12, s + D) - (s + 1)
        a("s_waitcnt vmcnt(%d)" % (9 * rem))
        if s in (0, 1, 6, 11):
            a.stamp()
        slot = s % D
        for i in range(4):
            for j in range(5):
                acc = 4 * (i * 5 + j)
                ra = FB + 36 * slot + 4 * (4 + j)
                rb = FB + 36 * slot + 4 * i
                c = "0" if s == 0 else "a[%d:%d]" % (acc, acc + 3)
                a("v_mfma_f32_16x16x32_bf16 a[%d:%d], v[%d:%d], v[%d:%d], %s" % (acc, acc + 3, ra, ra + 3, rb, rb + 3, c))
        if s + D < 12:
            loads(s + D)
    a("s_nop 7")
    a.stamp()
    a("s_mul_i32 s15, s3, 20480")
    a("v_add_u32 v5, s15, v3")
    L_skip = []
    for i in range(4):
        lab = a.newlabel("k5sk")
        a("s_cmp_eq_u32 s3, %d" % i)
        a("s_cbranch_scc1 %s" % lab)
        for j in range(5):
            t = i * 5 + j
            a("ds_write_b128 v5, a[%d:%d] offset:%d" % (4 * t, 4 * t + 3, t * 1024))
        a.label(lab)
    L_done = a.newlabel("k5own")
    for i in range(4):
        lab = a.newlabel("k5o")
        a("s_cmp_lg_u32 s3, %d" % i)
        a("s_cbranch_scc1 %s" % lab)
        for r in range(20):
            a("v_accvgpr_read_b32 v%d, a%d" % (16 + r, 20 * i + r))
        a("s_branch %s" % L_done)
        a.label(lab)
    a.label(L_done)
    a("s_waitcnt lgkmcnt(0)")
    a.stamp()
    a("s_barrier")
    a.stamp()
    a("s_mul_i32 s15, s3, 5120")
    a("v_add_u32 v5, s15, v3")
    for o in range(1, 4):
        a("s_add_u32 s22, s3, %d" % o)
        a("s_and_b32 s22, s22, 3")
        a("s_mul_i32 s22, s22, 20480")
        a("v_add_u32 v%d, s22, v5" % (36 + o))
    for o in range(1, 4):
        for j in range(5):
            r = 40 + 20 * (o - 1) + 4 * j
            a("ds_read_b128 v[%d:%d], v%d offset:%d" % (r, r + 3, 36 + o, j * 1024))
    a("s_waitcnt lgkmcnt(0)")
    a.stamp()
    for o in range(1, 4):
        for q in range(10):
            a.cadd(16 + 2 * q, 16 + 2 * q, 40 + 20 * (o - 1) + 2 * q)
    a("s_waitcnt vmcnt(0)")
    for j in range(5):
        for p in range(2):
            d = 16 + 4 * j + 2 * p
            h = 6 + 2 * j + p
            a("v_cvt_pk_bf16_f32 v%d, v%d, v%d" % (d + 1, d, d + 1))
            a("v_lshlrev_b32 v%d, 16, v%d" % (d, d + 1))
            a("v_and_b32 v%d, 0xffff0000, v%d" % (d + 1, d + 1))
            a("v_lshlrev_b32 v40, 16, v%d" % h)
            a("v_and_b32 v41, 0xffff0000, v%d" % h)
            a.cadd(d, d, 40)
            a("v_cvt_pk_bf16_f32 v%d, v%d, v%d" % (h, d, d + 1))
        a("buffer_store_dwordx2 v[%d:%d], v4, s[32:35], s13 offen offset:%d" % (6 + 2 * j, 7 + 2 * j, j * 32))
    a.stamp()
    a.stamp_flush(5, 3)
    a.label(L_end)
    a("s_endpgm")
    return name, FB + 36 * D, 100, 80
```

```python
import math
from asmlib import *
from fft_kernels import *

WS_BYTES = 0x10000000
import os
RL_MODE = int(os.environ.get("RL_MODE", "0"))
K2_NEXTRA = {0: 180, 1: 0, 2: 60}[RL_MODE]
K1_NRL = 0 if RL_MODE == 0 else 60
K3_NRL = 30 if RL_MODE == 1 else 0


def transpose8x8(a, src, dst):
    for j in range(8):
        for p in range(4):
            lo = src + 4 * (2 * p) + j // 2
            hi = src + 4 * (2 * p + 1) + j // 2
            a("v_perm_b32 v%d, v%d, v%d, s%d" % (dst + 4 * j + p, hi, lo, 37 if j & 1 else 36))


def store_lines_via_lds(a, vaddr, sbase):
    a("s_mul_i32 s26, s3, 9216")
    a("v_mul_u32_u24 v72, 144, v1")
    a("v_add_u32 v72, s26, v72")
    for j in range(8):
        a("ds_write_b128 v72, v[%d:%d] offset:%d" % (40 + 4 * j, 43 + 4 * j, j * 16))
    a("v_lshrrev_b32 v73, 3, v1")
    a("v_mul_u32_u24 v74, 144, v73")
    a("v_and_b32 v75, 7, v1")
    a("v_lshl_add_u32 v74, v75, 4, v74")
    a("v_add_u32 v74, s26, v74")
    a("v_lshlrev_b32 v73, 2, v73")
    a("v_lshlrev_b32 v75, 4, v75")
    a("s_waitcnt lgkmcnt(0)")
    for m in range(8):
        a("ds_read_b128 v[%d:%d], v74 offset:%d" % (40 + 4 * m, 43 + 4 * m, m * 8 * 144))
        a("ds_bpermute_b32 v%d, v73, v%d offset:%d" % (8 + m, vaddr, m * 32))
    a("s_waitcnt lgkmcnt(0)")
    for m in range(8):
        a("v_add_u32 v%d, v%d, v75" % (8 + m, 8 + m))
    for m in range(8):
        a("buffer_store_dwordx4 v[%d:%d], v%d, s[28:31], s%d offen" % (40 + 4 * m, 43 + 4 * m, 8 + m, sbase))


def relayout_wgu(a, kidx):
    a("s_load_dwordx4 s[8:11], s[0:1], 32")
    a("s_mov_b32 s36, 0x05040100")
    a("s_mov_b32 s37, 0x07060302")
    L_up = a.newlabel("rl_up")
    L_go = a.newlabel("rl_go")
    a("s_mul_i32 s20, s14, 43691")
    a("s_lshr_b32 s20, s20, 17")
    a("s_mul_i32 s21, s20, 3")
    a("s_sub_u32 s21, s14, s21")
    a("s_and_b32 s15, s20, 1")
    a("s_lshr_b32 s20, s20, 1")
    a("s_waitcnt lgkmcnt(0)")
    a.srd(28, 6, WS_BYTES)
    a("s_cmp_eq_u32 s15, 1")
    a("s_cbranch_scc1 %s" % L_up)
    a.srd(16, 8, 640 * 1536 * 2)
    a("s_branch %s" % L_go)
    a.label(L_up)
    a.srd(16, 10, 640 * 1536 * 2)
    a.label(L_go)
    a("s_lshl_b32 s22, s21, 6")
    a("v_add_u32 v3, s22, v1")
    a("v_lshlrev_b32 v4, 4, v3")
    a("s_mul_i32 s22, s20, 24576")
    for r in range(8):
        a("s_add_u32 s24, s22, %d" % (r * 3072))
        a("buffer_load_dwordx4 v[%d:%d], v4, s[16:19], s24 offen" % (8 + 4 * r, 11 + 4 * r))
    a("v_lshrrev_b32 v5, 1, v3")
    a("v_mul_u32_u24 v5, 40960, v5")
    a("v_and_b32 v6, 1, v3")
    a("v_lshl_add_u32 v5, v6, 7, v5")
    a("s_lshr_b32 s22, s20, 1")
    a("s_lshl_b32 s22, s22, 10")
    a("s_and_b32 s23, s20, 1")
    a("s_lshl_b32 s23, s23, 9")
    a("s_add_u32 s22, s22, s23")
    a("s_lshl_b32 s23, s15, 8")
    a("s_add_u32 s22, s22, s23")
    a("s_add_u32 s22, s22, 0x%x" % WS_WGU)
    a("s_waitcnt vmcnt(0)")
    transpose8x8(a, 8, 40)
    store_lines_via_lds(a, 5, 22)
    a.rt_flush(kidx)
    a("s_endpgm")


def relayout_wdf(a, kidx):
    a("s_load_dwordx2 s[12:13], s[0:1], 48")
    a("s_mov_b32 s36, 0x05040100")
    a("s_mov_b32 s37, 0x07060302")
    a("s_lshl_b32 s14, s14, 6")
    a("v_add_u32 v3, s14, v1")
    a("s_mov_b32 s20, 52429")
    a("v_mul_lo_u32 v4, v3, s20")
    a("v_lshrrev_b32 v4, 22, v4")
    a("v_mul_u32_u24 v5, 80, v4")
    a("v_sub_u32 v5, v3, v5")
    a("v_mul_u32_u24 v6, 10240, v4")
    a("v_lshl_add_u32 v6, v5, 4, v6")
    a("s_waitcnt lgkmcnt(0)")
    a.srd(28, 6, WS_BYTES)
    a.srd(16, 12, 1536 * 640 * 2)
    for r in range(8):
        if r < 4:
            a("buffer_load_dwordx4 v[%d:%d], v6, s[16:19], 0 offen offset:%d" % (8 + 4 * r, 11 + 4 * r, r * 1280))
        else:
            if r == 4:
                a("s_movk_i32 s24, 5120")
            a("buffer_load_dwordx4 v[%d:%d], v6, s[16:19], s24 offen offset:%d" % (8 + 4 * r, 11 + 4 * r, (r - 4) * 1280))
    a("v_lshrrev_b32 v7, 1, v5")
    a("v_mul_u32_u24 v7, 49152, v7")
    a("v_lshrrev_b32 v3, 2, v4")
    a("v_lshl_add_u32 v7, v3, 10, v7")
    a("v_and_b32 v3, 3, v4")
    a("v_lshl_add_u32 v7, v3, 8, v7")
    a("v_and_b32 v3, 1, v5")
    a("v_lshl_add_u32 v7, v3, 7, v7")
    a("s_mov_b32 s22, 0x%x" % WS_WDF)
    a("s_waitcnt vmcnt(0)")
    transpose8x8(a, 8, 40)
    store_lines_via_lds(a, 7, 22)
    a.rt_flush(kidx)
    a("s_endpgm")


def relayout_path(a, L_end):
    if K2_NEXTRA == 0:
        return
    L_wd = a.newlabel("rl_wd")
    a("s_cmp_ge_u32 s2, %d" % (321 + K2_NEXTRA))
    a("s_cbranch_scc1 %s" % L_end)
    a("v_and_b32 v1, 63, v0")
    a("v_lshrrev_b32 v2, 6, v0")
    a("s_nop 0")
    a("v_readfirstlane_b32 s3, v2")
    a("s_sub_u32 s14, s2, 321")
    a("s_lshl_b32 s14, s14, 2")
    a("s_add_u32 s14, s14, s3")
    if RL_MODE == 0:
        a("s_cmp_ge_u32 s14, 480")
        a("s_cbranch_scc1 %s" % L_wd)
        relayout_wgu(a, 2)
        a.label(L_wd)
        a("s_sub_u32 s14, s14, 480")
    relayout_wdf(a, 2)


K4_SLOT = 20480
K4_NS = 6
K4_PREFETCH = False
K4_STFLAG = os.environ.get("K4_STFLAG", " sc1")
K4_PRO = int(os.environ.get("K4_PRO", "3"))
K4_LDS = K4_NS * K4_SLOT


def gelu_epilogue_tile(a, acc, T):
    G = [T + 2 * p for p in range(4)]
    U = [T + 8 + 2 * p for p in range(4)]
    Z = [T + 16 + 2 * p for p in range(4)]
    for p in range(4):
        a("v_cvt_pk_bf16_f32 v%d, v%d, v%d" % (G[p] + 1, acc + 2 * p, acc + 2 * p + 1))
    for p in range(4):
        a("v_cvt_pk_bf16_f32 v%d, v%d, v%d" % (U[p] + 1, acc + 8 + 2 * p, acc + 9 + 2 * p))
    for p in range(4):
        a("v_lshlrev_b32 v%d, 16, v%d" % (G[p], G[p] + 1))
        a("v_and_b32 v%d, 0xffff0000, v%d" % (G[p] + 1, G[p] + 1))
    for p in range(4):
        a("v_pk_mul_f32 %s, %s, %s" % (a.P(Z[p]), a.P(G[p]), a.P(G[p])))
    for p in range(4):
        a("v_pk_fma_f32 %s, %s, s[40:41], %s" % (a.P(Z[p]), a.P(Z[p]), a.P(T + 24)))
    for p in range(4):
        a("v_pk_mul_f32 %s, %s, %s" % (a.P(Z[p]), a.P(Z[p]), a.P(G[p])))
    for p in range(4):
        a("v_exp_f32 v%d, v%d" % (Z[p], Z[p]))
        a("v_exp_f32 v%d, v%d" % (Z[p] + 1, Z[p] + 1))
    for p in range(4):
        a("v_lshlrev_b32 v%d, 16, v%d" % (U[p], U[p] + 1))
        a("v_and_b32 v%d, 0xffff0000, v%d" % (U[p] + 1, U[p] + 1))
    for p in range(4):
        a("v_pk_add_f32 %s, %s, s[44:45]" % (a.P(Z[p]), a.P(Z[p])))
    for p in range(4):
        a("v_rcp_f32 v%d, v%d" % (Z[p], Z[p]))
        a("v_rcp_f32 v%d, v%d" % (Z[p] + 1, Z[p] + 1))
    a("s_nop 0")
    for p in range(4):
        a("v_pk_mul_f32 %s, %s, %s" % (a.P(Z[p]), a.P(Z[p]), a.P(G[p])))
    for p in range(4):
        a("v_cvt_pk_bf16_f32 v%d, v%d, v%d" % (Z[p] + 1, Z[p], Z[p] + 1))
    for p in range(4):
        a("v_lshlrev_b32 v%d, 16, v%d" % (Z[p], Z[p] + 1))
        a("v_and_b32 v%d, 0xffff0000, v%d" % (Z[p] + 1, Z[p] + 1))
    for p in range(4):
        a("v_pk_mul_f32 %s, %s, %s" % (a.P(Z[p]), a.P(Z[p]), a.P(U[p])))
    for p in range(4):
        a("v_cvt_pk_bf16_f32 v%d, v%d, v%d" % (acc + p, Z[p], Z[p] + 1))


def gen_k4(a):
    name = "k4_kernel"
    kernel_header(a, name)
    L_end = a.newlabel("k4end")
    a("s_cmp_ge_u32 s2, 256")
    a("s_cbranch_scc1 %s" % L_end)
    a("s_load_dwordx2 s[6:7], s[0:1], 72")
    a("v_and_b32 v1, 63, v0")
    a("v_lshrrev_b32 v2, 6, v0")
    a("s_nop 0")
    a("v_readfirstlane_b32 s3, v2")
    a("s_and_b32 s13, s2, 7")
    a("s_lshr_b32 s14, s2, 3")
    a("s_and_b32 s8, s13, 1")
    a("s_lshl_b32 s8, s8, 3")
    a("s_and_b32 s15, s14, 7")
    a("s_add_u32 s8, s8, s15")
    a("s_lshr_b32 s9, s13, 1")
    a("s_lshl_b32 s9, s9, 2")
    a("s_lshr_b32 s15, s14, 3")
    a("s_add_u32 s9, s9, s15")
    a("s_bfe_u32 s10, s3, 0x10001")
    a("s_and_b32 s11, s3, 1")
    a("s_lshr_b32 s30, s3, 2")
    a("v_lshlrev_b32 v3, 4, v1")
    a("s_lshr_b32 s13, s3, 1")
    a("s_and_b32 s14, s3, 1")
    a("s_lshl_b32 s14, s14, 10")
    a("s_lshl_b32 s15, s9, 2")
    a("s_add_u32 s15, s15, s13")
    a("s_mul_i32 s20, s15, 40960")
    a("s_add_u32 s20, s20, s14")
    a("s_add_u32 s20, s20, 0x%x" % WS_LN2F)
    a("s_mul_i32 s15, s8, 6")
    a("s_add_u32 s15, s15, s13")
    a("s_mul_i32 s21, s15, 40960")
    a("s_add_u32 s21, s21, s14")
    a("s_add_u32 s21, s21, 0x%x" % WS_WGU)
    a("s_add_u32 s22, s21, %d" % (4 * 40960))
    a("s_lshl_b32 s12, s3, 10")
    a("s_lshl_b32 s13, s10, 12")
    a("s_lshl_b32 s14, s30, 10")
    a("s_add_u32 s13, s13, s14")
    a("v_add_u32 v5, s13, v3")
    a("v_add_u32 v6, %d, v5" % (3 * K4_SLOT))
    a("s_mul_i32 s13, s11, 6144")
    a("s_add_u32 s13, s13, 8192")
    a("s_add_u32 s13, s13, s14")
    a("v_add_u32 v8, s13, v3")
    a("v_add_u32 v9, %d, v8" % (3 * K4_SLOT))
    a("v_lshlrev_b32 v14, 6, v1")
    a("s_and_b32 s31, s2, 1")
    a("s_mul_i32 s31, s31, %d" % (20 * 49152))
    a("s_lshr_b32 s13, s2, 3")
    a("s_mul_i32 s13, s13, 30720")
    a("s_add_u32 s31, s31, s13")
    a("s_lshl_b32 s13, s3, 12")
    a("s_add_u32 s31, s31, s13")
    a("s_add_u32 s31, s31, 0x%x" % WS_WDF)
    a("s_waitcnt lgkmcnt(0)")
    a.srd(16, 6, WS_BYTES)
    a.stamp_init()
    a.stamp()
    ACC = 64
    FR = [[16 + 20 * s + 4 * i for i in range(5)] for s in range(2)]
    NST = 20
    D = K4_NS - 1
    L_g1 = a.newlabel("k4g1")
    L_join = a.newlabel("k4join")
    a("s_cmp_eq_u32 s30, 1")
    a("s_cbranch_scc1 %s" % L_g1)
    for g in range(2):
        nd = 3 if g == 0 else 2

        def dma_list(stage):
            slot = stage % K4_NS
            out = []
            for c in range(nd):
                out.append(["s_add_u32 m0, s12, %d" % (slot * K4_SLOT + c * 8192),
                            "s_nop 0",
                            "buffer_load_dwordx4 v3, s[16:19], s%d offen lds" % (20 + c),
                            "s_add_u32 s%d, s%d, 2048" % (20 + c, 20 + c)])
            return out

        def read_list(stage, st):
            slot = stage % K4_NS
            f = FR[st]
            hi = slot // 3
            so = (slot % 3) * K4_SLOT
            out = []
            for i in range(2):
                out.append("ds_read_b128 v[%d:%d], v%d offset:%d" % (f[i], f[i] + 3, 5 + hi, so + i * 2048))
            for i in range(3):
                out.append("ds_read_b128 v[%d:%d], v%d offset:%d" % (f[2 + i], f[2 + i] + 3, 8 + hi, so + i * 2048))
            return out

        def mfma_list(st, first):
            f = FR[st]
            out = []
            for i in range(2):
                for j in range(3):
                    acc = ACC + 16 * (i * 3 + j)
                    c = "0" if first else "v[%d:%d]" % (acc, acc + 15)
                    out.append("v_mfma_f32_32x32x16_bf16 v[%d:%d], v[%d:%d], v[%d:%d], %s"
                               % (acc, acc + 15, f[2 + j], f[2 + j] + 3, f[i], f[i] + 3, c))
            return out

        for s in range(K4_PRO):
            for d in dma_list(s):
                for x in d:
                    a(x)
        NPF = 0
        a("s_waitcnt vmcnt(%d)" % (nd * (K4_PRO - 1)))
        a("s_barrier")
        if g == 0:
            a.stamp()
        for x in read_list(0, 0):
            a(x)
        for s in range(K4_PRO, D):
            for d in dma_list(s):
                for x in d:
                    a(x)
        for s in range(NST):
            issued = min(s + D - 1, NST - 1)
            mf = mfma_list(s & 1, s == 0)
            fill = [[] for _ in range(6)]
            if s + 1 < NST:
                a("s_waitcnt vmcnt(%d) lgkmcnt(0)" % (nd * (issued - (s + 1)) + (1 if s > 15 else 0)))
                a("s_barrier")
                rl = read_list(s + 1, (s + 1) & 1)
                fill[0] = rl[0:2]
                fill[1] = rl[2:4]
                fill[2] = rl[4:5]
                if s + D < NST:
                    dl = dma_list(s + D)
                    for i, d in enumerate(dl):
                        fill[2 + i] = fill[2 + i] + d
            else:
                a("s_waitcnt lgkmcnt(0)")
            if s == 15:
                fill[3] = fill[3] + ["buffer_load_dword v160, v14, s[16:19], s31 offen"]
            for i in range(6):
                a(mf[i])
                for x in fill[i]:
                    a(x)
            if g == 0 and s in (1, 10):
                a.stamp()
        if g == 0:
            a("s_branch %s" % L_join)
            a.label(L_g1)
            if a.stamps_on:
                a.nst -= 3
    a.label(L_join)
    if a.stamps_on:
        a.nst += 3
    a("s_barrier")
    a("s_nop 7")
    a.stamp()
    a("s_mul_i32 s13, s3, 12288")
    a("v_add_u32 v10, s13, v3")
    a("s_xor_b32 s13, s3, 4")
    a("s_mul_i32 s13, s13, 12288")
    a("v_add_u32 v11, s13, v3")
    a("v_bfe_u32 v12, v1, 4, 1")
    a("v_mul_u32_u24 v12, 49152, v12")
    a("v_and_b32 v13, 15, v1")
    a("v_lshl_add_u32 v12, v13, 4, v12")
    a("v_lshrrev_b32 v13, 5, v1")
    a("v_lshl_add_u32 v12, v13, 8, v12")
    a("s_lshl_b32 s13, s9, 2")
    a("s_lshl_b32 s14, s10, 1")
    a("s_add_u32 s13, s13, s14")
    a("s_add_u32 s13, s13, s30")
    a("s_mul_i32 s13, s13, 98304")
    a("s_add_u32 s13, s13, 0x%x" % WS_ACTF)
    a("s_mul_i32 s14, s8, 6")
    a("s_mul_i32 s15, s11, 3")
    a("s_add_u32 s14, s14, s15")
    a("s_lshl_b32 s14, s14, 9")
    a("s_add_u32 s13, s13, s14")
    k = -2.0 * math.sqrt(2.0 / math.pi) * math.log2(math.e)
    a("s_mov_b32 s40, %s" % f32hex(0.044715 * k))
    a("s_mov_b32 s41, %s" % f32hex(0.044715 * k))
    a("v_mov_b32 v40, %s" % f32hex(k))
    a("v_mov_b32 v41, %s" % f32hex(k))
    a("s_mov_b32 s44, 1.0")
    a("s_mov_b32 s45, 1.0")
    L_x1 = a.newlabel("k4x1")
    L_x2 = a.newlabel("k4x2")
    a("s_cmp_eq_u32 s30, 1")
    a("s_cbranch_scc1 %s" % L_x1)
    nst0 = a.nst if a.stamps_on else 0
    for g in range(2):
        KB = ACC + 48 * g
        SB = ACC + 48 * (1 - g)
        if a.stamps_on:
            a.nst = nst0

        def wr(j):
            for q in range(4):
                r = SB + 16 * j + 4 * q
                a("ds_write_b128 v10, v[%d:%d] offset:%d" % (r, r + 3, (4 * j + q) * 1024))

        def rd(j):
            for q in range(4):
                r = SB + 16 * j + 4 * q
                a("ds_read_b128 v[%d:%d], v11 offset:%d" % (r, r + 3, (4 * j + q) * 1024))

        wr(0)
        a("s_waitcnt lgkmcnt(0)")
        a("s_barrier")
        a.stamp()
        for j in range(3):
            rd(j)
            if j < 2:
                wr(j + 1)
                a("s_waitcnt lgkmcnt(4)")
            else:
                a("s_waitcnt lgkmcnt(0)")
            acc = KB + 16 * j
            for r in range(0, 16, 2):
                a.cadd(acc + r, acc + r, SB + 16 * j + r)
            gelu_epilogue_tile(a, acc, 16)
            a("s_nop 1")
            a("v_permlane32_swap_b32 v%d, v%d" % (acc, acc + 2))
            a("v_permlane32_swap_b32 v%d, v%d" % (acc + 1, acc + 3))
            a("buffer_store_dwordx4 v[%d:%d], v12, s[16:19], s13 offen offset:%d%s" % (acc, acc + 3, j * 512, K4_STFLAG))
            if j < 2:
                a("s_waitcnt lgkmcnt(0)")
                a("s_barrier")
            a.stamp()
        if g == 0:
            a("s_branch %s" % L_x2)
            a.label(L_x1)
    a.label(L_x2)
    a.stamp()
    a.stamp_flush(4, 3)
    a.label(L_end)
    a("s_endpgm")
    return name, 164, 100


def gen_k4b(a):
    name = "k4_kernel"
    kernel_header(a, name)
    L_end = a.newlabel("k4end")
    a("s_cmp_ge_u32 s2, 256")
    a("s_cbranch_scc1 %s" % L_end)
    a("s_load_dwordx2 s[6:7], s[0:1], 72")
    a("v_and_b32 v1, 63, v0")
    a("v_lshrrev_b32 v2, 6, v0")
    a("s_nop 0")
    a("v_readfirstlane_b32 s3, v2")
    a("s_and_b32 s13, s2, 7")
    a("s_lshr_b32 s14, s2, 3")
    a("s_and_b32 s8, s13, 1")
    a("s_lshl_b32 s8, s8, 3")
    a("s_and_b32 s15, s14, 7")
    a("s_add_u32 s8, s8, s15")
    a("s_lshr_b32 s9, s13, 1")
    a("s_lshl_b32 s9, s9, 2")
    a("s_lshr_b32 s15, s14, 3")
    a("s_add_u32 s9, s9, s15")
    a("s_and_b32 s10, s3, 3")
    a("s_lshr_b32 s11, s3, 2")
    a("s_lshr_b32 s30, s3, 2")
    a("v_lshlrev_b32 v3, 4, v1")
    a("s_lshr_b32 s13, s3, 1")
    a("s_and_b32 s14, s3, 1")
    a("s_lshl_b32 s14, s14, 10")
    a("s_lshl_b32 s15, s9, 2")
    a("s_add_u32 s15, s15, s13")
    a("s_mul_i32 s20, s15, 40960")
    a("s_add_u32 s20, s20, s14")
    a("s_add_u32 s20, s20, 0x%x" % WS_LN2F)
    a("s_mul_i32 s15, s8, 6")
    a("s_add_u32 s15, s15, s13")
    a("s_mul_i32 s21, s15, 40960")
    a("s_add_u32 s21, s21, s14")
    a("s_add_u32 s21, s21, 0x%x" % WS_WGU)
    a("s_add_u32 s22, s21, %d" % (4 * 40960))
    a("s_lshl_b32 s12, s3, 10")
    a("s_lshl_b32 s13, s10, 11")
    a("v_add_u32 v5, s13, v3")
    a("v_add_u32 v6, %d, v5" % (3 * K4_SLOT))
    a("s_mul_i32 s13, s11, 6144")
    a("s_add_u32 s13, s13, 8192")
    a("v_add_u32 v8, s13, v3")
    a("v_add_u32 v9, %d, v8" % (3 * K4_SLOT))
    a("v_lshlrev_b32 v14, 6, v1")
    a("s_and_b32 s31, s2, 1")
    a("s_mul_i32 s31, s31, %d" % (20 * 49152))
    a("s_lshr_b32 s13, s2, 3")
    a("s_mul_i32 s13, s13, 30720")
    a("s_add_u32 s31, s31, s13")
    a("s_lshl_b32 s13, s3, 12")
    a("s_add_u32 s31, s31, s13")
    a("s_add_u32 s31, s31, 0x%x" % WS_WDF)
    a("s_waitcnt lgkmcnt(0)")
    a.srd(16, 6, WS_BYTES)
    a.stamp_init()
    a.stamp()
    ACC = 80
    FR = [[16 + 32 * s + 4 * i for i in range(8)] for s in range(2)]
    NST = 20
    D = K4_NS - 1
    L_g1 = a.newlabel("k4g1")
    L_join = a.newlabel("k4join")
    a("s_cmp_eq_u32 s30, 1")
    a("s_cbranch_scc1 %s" % L_g1)
    for g in range(2):
        nd = 3 if g == 0 else 2

        def dma_list(stage):
            slot = stage % K4_NS
            out = []
            for c in range(nd):
                out.append(["s_add_u32 m0, s12, %d" % (slot * K4_SLOT + c * 8192),
                            "s_nop 0",
                            "buffer_load_dwordx4 v3, s[16:19], s%d offen lds" % (20 + c),
                            "s_add_u32 s%d, s%d, 2048" % (20 + c, 20 + c)])
            return out

        def read_list(stage, st):
            slot = stage % K4_NS
            f = FR[st]
            hi = slot // 3
            so = (slot % 3) * K4_SLOT
            out = []
            for kb in range(2):
                out.append("ds_read_b128 v[%d:%d], v%d offset:%d" % (f[4 * kb], f[4 * kb] + 3, 5 + hi, so + kb * 1024))
                for i in range(3):
                    out.append("ds_read_b128 v[%d:%d], v%d offset:%d" % (f[4 * kb + 1 + i], f[4 * kb + 1 + i] + 3, 8 + hi, so + i * 2048 + kb * 1024))
            return out

        def mfma_list(st, first):
            f = FR[st]
            out = []
            for kb in range(2):
                for j in range(3):
                    acc = ACC + 16 * j
                    c = "0" if (first and kb == 0) else "v[%d:%d]" % (acc, acc + 15)
                    out.append("v_mfma_f32_32x32x16_bf16 v[%d:%d], v[%d:%d], v[%d:%d], %s"
                               % (acc, acc + 15, f[4 * kb + 1 + j], f[4 * kb + 1 + j] + 3, f[4 * kb], f[4 * kb] + 3, c))
            return out

        for s in range(K4_PRO):
            for d in dma_list(s):
                for x in d:
                    a(x)
        a("s_waitcnt vmcnt(%d)" % (nd * (K4_PRO - 1)))
        a("s_barrier")
        if g == 0:
            a.stamp()
        for x in read_list(0, 0):
            a(x)
        for s in range(K4_PRO, D):
            for d in dma_list(s):
                for x in d:
                    a(x)
        for s in range(NST):
            issued = min(s + D - 1, NST - 1)
            mf = mfma_list(s & 1, s == 0)
            fill = [[] for _ in range(6)]
            if s + 1 < NST:
                a("s_waitcnt vmcnt(%d) lgkmcnt(0)" % (nd * (issued - (s + 1)) + (1 if s > 15 else 0)))
                a("s_barrier")
                rl = read_list(s + 1, (s + 1) & 1)
                fill[0] = rl[0:2]
                fill[1] = rl[2:4]
                fill[2] = rl[4:6]
                fill[3] = rl[6:8]
                if s + D < NST:
                    dl = dma_list(s + D)
                    for i, d in enumerate(dl):
                        fill[3 + i] = fill[3 + i] + d
            else:
                a("s_waitcnt lgkmcnt(0)")
            if s == 15:
                fill[4] = fill[4] + ["buffer_load_dword v128, v14, s[16:19], s31 offen"]
            for i in range(6):
                a(mf[i])
                for x in fill[i]:
                    a(x)
            if g == 0 and s in (1, 10):
                a.stamp()
        if g == 0:
            a("s_branch %s" % L_join)
            a.label(L_g1)
            if a.stamps_on:
                a.nst -= 3
    a.label(L_join)
    if a.stamps_on:
        a.nst += 3
    a.stamp()
    a("v_bfe_u32 v12, v1, 4, 1")
    a("v_mul_u32_u24 v12, 49152, v12")
    a("v_and_b32 v13, 15, v1")
    a("v_lshl_add_u32 v12, v13, 4, v12")
    a("v_lshrrev_b32 v13, 5, v1")
    a("v_lshl_add_u32 v12, v13, 8, v12")
    a("s_lshl_b32 s13, s9, 2")
    a("s_add_u32 s13, s13, s10")
    a("s_mul_i32 s13, s13, 98304")
    a("s_add_u32 s13, s13, 0x%x" % WS_ACTF)
    a("s_mul_i32 s14, s8, 6")
    a("s_mul_i32 s15, s11, 3")
    a("s_add_u32 s14, s14, s15")
    a("s_lshl_b32 s14, s14, 9")
    a("s_add_u32 s13, s13, s14")
    k = -2.0 * math.sqrt(2.0 / math.pi) * math.log2(math.e)
    a("s_mov_b32 s40, %s" % f32hex(0.044715 * k))
    a("s_mov_b32 s41, %s" % f32hex(0.044715 * k))
    a("v_mov_b32 v40, %s" % f32hex(k))
    a("v_mov_b32 v41, %s" % f32hex(k))
    a("s_mov_b32 s44, 1.0")
    a("s_mov_b32 s45, 1.0")
    a("s_nop 7")
    for j in range(3):
        acc = ACC + 16 * j
        gelu_epilogue_tile(a, acc, 16)
        a("s_nop 1")
        a("v_permlane32_swap_b32 v%d, v%d" % (acc, acc + 2))
        a("v_permlane32_swap_b32 v%d, v%d" % (acc + 1, acc + 3))
        a("buffer_store_dwordx4 v[%d:%d], v12, s[16:19], s13 offen offset:%d%s" % (acc, acc + 3, j * 512, K4_STFLAG))
        a.stamp()
    a.stamp()
    a.stamp_flush(4, 3)
    a.label(L_end)
    a("s_endpgm")
    return name, 132, 100


K5_LDS = 4 * 20 * 1024
K5_DEPTH = int(os.environ.get("K5_DEPTH", "4"))
K5_ILV = os.environ.get("K5_ILV", "1") == "1"
import os
K5_XCDMAP = os.environ.get("K5_XCDMAP", "1") == "1"


def gen_k5(a):
    name = "k5_kernel"
    kernel_header(a, name)
    L_end = a.newlabel("k5end")
    a("s_cmp_ge_u32 s2, 256")
    a("s_cbranch_scc1 %s" % L_end)
    a("s_load_dwordx2 s[6:7], s[0:1], 72")
    a("s_load_dwordx2 s[4:5], s[0:1], 56")
    a("v_and_b32 v1, 63, v0")
    a("v_lshrrev_b32 v2, 6, v0")
    a("s_nop 0")
    a("v_readfirstlane_b32 s3, v2")
    if K5_XCDMAP:
        a("s_and_b32 s13, s2, 7")
        a("s_lshr_b32 s14, s2, 3")
        a("s_and_b32 s8, s13, 1")
        a("s_lshl_b32 s8, s8, 2")
        a("s_and_b32 s15, s14, 3")
        a("s_add_u32 s8, s8, s15")
        a("s_lshr_b32 s9, s13, 1")
        a("s_lshl_b32 s9, s9, 3")
        a("s_lshr_b32 s15, s14, 2")
        a("s_add_u32 s9, s9, s15")
    else:
        a("s_and_b32 s8, s2, 7")
        a("s_lshr_b32 s9, s2, 3")
    a("v_lshlrev_b32 v3, 4, v1")
    if K5_ILV:
        a("s_lshl_b32 s12, s3, 10")
    else:
        a("s_mul_i32 s12, s3, 12288")
    a("s_mul_i32 s13, s9, %d" % (4 * 49152))
    a("s_add_u32 s13, s13, s12")
    a("s_add_u32 s13, s13, 0x%x" % WS_ACTF)
    for i in range(4):
        a("s_add_u32 s%d, s13, %d" % (20 + i, i * 49152))
    a("s_mul_i32 s13, s8, %d" % (5 * 49152))
    a("s_add_u32 s13, s13, s12")
    a("s_add_u32 s13, s13, 0x%x" % WS_WDF)
    for j in range(5):
        a("s_add_u32 s%d, s13, %d" % (24 + j, j * 49152))
    a("s_waitcnt lgkmcnt(0)")
    a.srd(16, 6, WS_BYTES)
    a.srd(32, 4, X_BYTES)
    a.stamp_init()
    a.stamp()
    D = K5_DEPTH
    FB = 16

    def loads(step):
        slot = step % D
        if K5_ILV:
            for i in range(9):
                r = FB + 36 * slot + 4 * i
                a("buffer_load_dwordx4 v[%d:%d], v3, s[16:19], s%d offen" % (r, r + 3, 20 + i))
                a("s_add_u32 s%d, s%d, 4096" % (20 + i, 20 + i))
            return
        if step and step % 4 == 0:
            for i in range(9):
                a("s_add_u32 s%d, s%d, 4096" % (20 + i, 20 + i))
        for i in range(9):
            r = FB + 36 * slot + 4 * i
            a("buffer_load_dwordx4 v[%d:%d], v3, s[16:19], s%d offen offset:%d" % (r, r + 3, 20 + i, (step % 4) * 1024))

    a("v_and_b32 v4, 15, v1")
    a("v_mul_u32_u24 v4, 1280, v4")
    a("v_lshrrev_b32 v5, 4, v1")
    a("v_lshl_add_u32 v4, v5, 3, v4")
    a("s_lshl_b32 s13, s9, 2")
    a("s_add_u32 s13, s13, s3")
    a("s_mul_i32 s13, s13, 20480")
    a("s_mul_i32 s14, s8, 160")
    a("s_add_u32 s13, s13, s14")
    a("s_add_u32 s14, s13, 0x%x" % WS_H)
    for j in range(5):
        a("buffer_load_dwordx2 v[%d:%d], v4, s[16:19], s14 offen offset:%d" % (6 + 2 * j, 7 + 2 * j, j * 32))
    for s in range(D):
        loads(s)
    for s in range(12):
        rem = min(12, s + D) - (s + 1)
        a("s_waitcnt vmcnt(%d)" % (9 * rem))
        if s in (0, 1, 6, 11):
            a.stamp()
        slot = s % D
        for i in range(4):
            for j in range(5):
                acc = 4 * (i * 5 + j)
                ra = FB + 36 * slot + 4 * (4 + j)
                rb = FB + 36 * slot + 4 * i
                c = "0" if s == 0 else "a[%d:%d]" % (acc, acc + 3)
                a("v_mfma_f32_16x16x32_bf16 a[%d:%d], v[%d:%d], v[%d:%d], %s" % (acc, acc + 3, ra, ra + 3, rb, rb + 3, c))
        if s + D < 12:
            loads(s + D)
    a("s_nop 7")
    a.stamp()
    a("s_mul_i32 s15, s3, 20480")
    a("v_add_u32 v5, s15, v3")
    L_skip = []
    for i in range(4):
        lab = a.newlabel("k5sk")
        a("s_cmp_eq_u32 s3, %d" % i)
        a("s_cbranch_scc1 %s" % lab)
        for j in range(5):
            t = i * 5 + j
            a("ds_write_b128 v5, a[%d:%d] offset:%d" % (4 * t, 4 * t + 3, t * 1024))
        a.label(lab)
    L_done = a.newlabel("k5own")
    for i in range(4):
        lab = a.newlabel("k5o")
        a("s_cmp_lg_u32 s3, %d" % i)
        a("s_cbranch_scc1 %s" % lab)
        for r in range(20):
            a("v_accvgpr_read_b32 v%d, a%d" % (16 + r, 20 * i + r))
        a("s_branch %s" % L_done)
        a.label(lab)
    a.label(L_done)
    a("s_waitcnt lgkmcnt(0)")
    a.stamp()
    a("s_barrier")
    a.stamp()
    a("s_mul_i32 s15, s3, 5120")
    a("v_add_u32 v5, s15, v3")
    for o in range(1, 4):
        a("s_add_u32 s22, s3, %d" % o)
        a("s_and_b32 s22, s22, 3")
        a("s_mul_i32 s22, s22, 20480")
        a("v_add_u32 v%d, s22, v5" % (36 + o))
    for o in range(1, 4):
        for j in range(5):
            r = 40 + 20 * (o - 1) + 4 * j
            a("ds_read_b128 v[%d:%d], v%d offset:%d" % (r, r + 3, 36 + o, j * 1024))
    a("s_waitcnt lgkmcnt(0)")
    a.stamp()
    for o in range(1, 4):
        for q in range(10):
            a.cadd(16 + 2 * q, 16 + 2 * q, 40 + 20 * (o - 1) + 2 * q)
    a("s_waitcnt vmcnt(0)")
    for j in range(5):
        for p in range(2):
            d = 16 + 4 * j + 2 * p
            h = 6 + 2 * j + p
            a("v_cvt_pk_bf16_f32 v%d, v%d, v%d" % (d + 1, d, d + 1))
            a("v_lshlrev_b32 v%d, 16, v%d" % (d, d + 1))
            a("v_and_b32 v%d, 0xffff0000, v%d" % (d + 1, d + 1))
            a("v_lshlrev_b32 v40, 16, v%d" % h)
            a("v_and_b32 v41, 0xffff0000, v%d" % h)
            a.cadd(d, d, 40)
            a("v_cvt_pk_bf16_f32 v%d, v%d, v%d" % (h, d, d + 1))
        a("buffer_store_dwordx2 v[%d:%d], v4, s[32:35], s13 offen offset:%d" % (6 + 2 * j, 7 + 2 * j, j * 32))
    a.stamp()
    a.stamp_flush(5, 3)
    a.label(L_end)
    a("s_endpgm")
    return name, FB + 36 * D, 100, 80
```
